```python
import torch

def _softmax(x, axis=-1):
    return torch.softmax(x, dim=axis)
def _gelu(x):
    return torch.nn.functional.gelu(x, approximate="tanh")
def _silu(x):
    return torch.nn.functional.silu(x)
def _sigmoid(x):
    return torch.sigmoid(x)
def _layernorm(x, axis=-1, eps=1e-5):
    m = x.mean(dim=axis, keepdim=True)
    v = x.var(dim=axis, keepdim=True, unbiased=False)
    return (x - m) / torch.sqrt(v + eps)
def _scatter_add(tgt, idx, src, axis=0):
    return tgt.clone().index_add_(axis, idx, src)
def _segment_sum(src, seg, n):
    out = torch.zeros((n,) + src.shape[1:], dtype=src.dtype)
    return out.index_add_(0, seg, src)
def _pad(x, pw):
    flat = tuple(v for pair in reversed(pw) for v in pair)
    return torch.nn.functional.pad(x, flat)

kernel_name = 'recurrent_scan__ssm_conv_s4d__mixer_channel_mlp__prompt'

def setup_inputs():

    _w = (lambda a: (lambda t: t.to(torch.bfloat16) if t.is_floating_point() else t)(torch.as_tensor(a)))
    def _A_setup():
        Bsz, L, D, N = 1, 2048, 576, 128
        return {
            "u": _w((lambda *s: torch.randn(*s, dtype=torch.bfloat16) * 0.05)(Bsz, L, D)),
            "log_A_real": _w((lambda *s: torch.randn(*s, dtype=torch.bfloat16) * 3.2)(D, N) * 0.5),
            "A_imag": _w((lambda *s: torch.randn(*s, dtype=torch.bfloat16) * 0.2)(D, N) * 3.14),
            "C_real": _w((lambda *s: torch.randn(*s, dtype=torch.bfloat16) * 0.4)(D, N) / N ** 0.5),
            "C_imag": _w((lambda *s: torch.randn(*s, dtype=torch.bfloat16) * 0.4)(D, N) / N ** 0.5),
            "log_dt": _w((lambda *s: torch.randn(*s, dtype=torch.bfloat16) * 0.2)(D) * 0.5 - 4.0),
            "D_skip": _w((lambda *s: torch.randn(*s, dtype=torch.bfloat16) * 0.2)(D)),
        }
    _A_in = _A_setup()

    def _B_setup():
        B, S, D, F = 1, 2048, 576, 4608
        return {
            "x": _w((lambda *s: torch.randn(*s, dtype=torch.bfloat16) * 0.05)(B, S, D)),
            "w1": _w((lambda *s: torch.randn(*s, dtype=torch.bfloat16) * 0.8)(D, F) * (D ** -0.5)),
            "b1": _w((lambda *s: torch.randn(*s, dtype=torch.bfloat16) * 0.4)(F)),
            "w2": _w((lambda *s: torch.randn(*s, dtype=torch.bfloat16) * 0.1)(F, D) * (F ** -0.5)),
            "b2": _w((lambda *s: torch.randn(*s, dtype=torch.bfloat16) * 0.1)(D)),
        }
    _B_in = _B_setup()

    return {
        "A_u": _A_in["u"],
        "A_log_A_real": _A_in["log_A_real"],
        "A_A_imag": _A_in["A_imag"],
        "A_C_real": _A_in["C_real"],
        "A_C_imag": _A_in["C_imag"],
        "A_log_dt": _A_in["log_dt"],
        "A_D_skip": _A_in["D_skip"],
        "B_x": _B_in["x"],
        "B_w1": _B_in["w1"],
        "B_b1": _B_in["b1"],
        "B_w2": _B_in["w2"],
        "B_b2": _B_in["b2"],
    }

def reference(A_u, A_log_A_real, A_A_imag, A_C_real, A_C_imag, A_log_dt, A_D_skip, B_x, B_w1, B_b1, B_w2, B_b2):
    def _A_ref(u, log_A_real, A_imag, C_real, C_imag, log_dt, D_skip):
        L = u.shape[1]
        dt = torch.exp(log_dt)
        A = -torch.exp(log_A_real) + 1j * A_imag
        C = (C_real + 1j * C_imag) * dt[:, None]
        pos = (lambda x, dt: x.to(dt))(torch.arange(L), log_dt.dtype)
        P = torch.exp((A * dt[:, None])[:, :, None] * pos[None, None, :])
        K = 2.0 * torch.einsum("dn,dnl->dl", C, P).real
        L2 = 2 * L
        u_t = (lambda x, *d: x.permute(*d))(u, 0, 2, 1)
        Kf = (lambda x, *a, **k: torch.fft.rfft(x.float(), *a, **k))(K, L2)
        Uf = (lambda x, *a, **k: torch.fft.rfft(x.float(), *a, **k))(u_t, L2)
        y = (lambda x, *a, **k: torch.fft.irfft(x, *a, **k).to(torch.bfloat16))(Uf * Kf[None, :, :], L2)[:, :, :L]
        y = (lambda x, *d: x.permute(*d))(y, 0, 2, 1)
        return y + u * D_skip[None, None, :]

    def _B_ref(x, w1, b1, w2, b2):
        y = _layernorm(x, axis=-1)
        h = _gelu(torch.einsum("bsd,df->bsf", y, w1) + b1)
        return torch.einsum("bsf,fd->bsd", h, w2) + b2

    x = A_u
    xn = _layernorm(x, axis=-1)
    s = _A_ref(xn, A_log_A_real, A_A_imag, A_C_real, A_C_imag, A_log_dt, A_D_skip)
    g = _silu(_B_ref(xn, B_w1, B_b1, B_w2, B_b2))
    return x + s * g
```

```python
class Asm:
    def __init__(self):
        self.lines = []
        self._uid = 0
    def __call__(self, s, *a):
        for l in s.strip('\n').split('\n'):
            self.lines.append('    ' + l.strip())
    def raw(self, s):
        self.lines.append(s)
    def label(self, name):
        self.lines.append(name + ':')
    def uid(self, p='L'):
        self._uid += 1
        return f'{p}_{self._uid}'
    def comment(self, s):
        self.lines.append('    ; ' + s)
    def text(self):
        return '\n'.join(self.lines) + '\n'

def vr(base, n=1, k='v'):
    if n == 1:
        return f'{k}{base}'
    return f'{k}[{base}:{base+n-1}]'
def ar(base, n=1):
    return vr(base, n, 'a')
def sr(base, n=1):
    return vr(base, n, 's')
def ur(idx, n=1):
    if idx < 256:
        assert idx + n <= 256
        return vr(idx, n, 'v')
    return vr(idx - 256, n, 'a')

HEADER = """; Kernarg layout (120 bytes): 12 inputs, out, debug, ws
"""

def kernel_prologue(name):
    return f""".globl {name}
.p2align 8
.type {name},@function
{name}:
"""

def kernel_desc(name, vgpr=512, sgpr=102, accum=256):
    return f""".amdhsa_kernel {name}
  .amdhsa_next_free_vgpr {vgpr}
  .amdhsa_next_free_sgpr {sgpr}
  .amdhsa_accum_offset {accum}
  .amdhsa_group_segment_fixed_size 0
  .amdhsa_kernarg_size 120
  .amdhsa_user_sgpr_count 2
  .amdhsa_user_sgpr_kernarg_segment_ptr 1
  .amdhsa_system_sgpr_workgroup_id_x 1
  .amdhsa_float_denorm_mode_32 3
.end_amdhsa_kernel
"""

def build_file(launches, kernels):
    out = []
    if len(launches) == 1 and launches[0][0] is None:
        _, g, b, lds = launches[0]
        out.append(f'; @launch grid=({g[0]},{g[1]},{g[2]}) block=({b[0]},{b[1]},{b[2]}) lds={lds}')
    else:
        for n, g, b, lds in launches:
            out.append(f'; @launch kernel={n} grid=({g[0]},{g[1]},{g[2]}) block=({b[0]},{b[1]},{b[2]}) lds={lds}')
    out.append('.amdgcn_target "amdgcn-amd-amdhsa--gfx950"')
    out.append('.text')
    for n, body, v, s, acc in kernels:
        out.append(kernel_prologue(n) + body)
    out.append('.section .rodata,"a"')
    for n, body, v, s, acc in kernels:
        out.append('.p2align 6')
        out.append(kernel_desc(n, v, s, acc))
    return '\n'.join(out)
```

```python
from asmlib import *
from layout import *
from sched import *

RAW = 0
WREG = 36864; WSZ = 30976
O_UC = 0; O_KP = 16640; O_SO = 26880
S_WS, S_WV = 16, 36
S_CH, S_WB, S_T0, S_T1, S_SC, S_DS = 40, 41, 42, 43, 44, 45
S_DSK, S_WSP = 46, 52
L = 60
V_F, V_G, V_RAW, V_UW, V_EU, V_ES, V_SR, V_SG, V_UZ = 4, 5, 6, 7, 23, 24, 25, 26, 27
FINE = False
ONE = False
W2HALF = False
W1LATE = 6
XSTEP = 7
LOCAL = False
TLB2 = True
PREF = True

def k_dma(a, chl, buf):
    a(f"""
    s_add_u32 s55, s{S_CH}, s{chl}
    s_lshl_b32 s55, s55, 12
    s_add_u32 s55, s55, {WS_K}
    """)
    for g in range(4):
        a(f"s_add_u32 m0, s{S_WB}, {O_KP + buf*5120 + g*1280 + 256}")
        a(f"s_add_u32 s56, s55, {g*1024}")
        a(f"buffer_load_dwordx4 v{V_SG}, s[{S_WS}:{S_WS+3}], s56 offen{' sc1' if ONE else ''} lds")

def conv_dma(a, with_k=True):
    for m in range(9):
        a(f"""
        v_add_u32 v2, {64*m}, v{L}
        v_mul_u32_u24 v3, 7282, v2
        v_lshrrev_b32 v3, 16, v3           ; lb = e/9
        v_mul_u32_u24 v8, 9, v3
        v_sub_u32 v8, v2, v8               ; ch = e%9
        v_mul_u32_u24 v3, 9216, v3
        v_lshl_add_u32 v3, v8, 4, v3
        s_add_u32 m0, s{S_T1}, {m*1024}
        s_nop 0
        buffer_load_dwordx4 v3, s[{S_WS}:{S_WS+3}], s{S_T0} offen{' sc1' if ONE else ''} lds
        """)
    if with_k: k_dma(a, S_WV, 0)

def conv_setup(a, early=None):
    W = f"s{S_WB}"
    if ONE:
        import k_one
        k_one.conv_prologue(a, WREG)
    a(f"""
    s_sub_u32 s3, s2, 192             ; b'
    s_mul_i32 s{S_CH}, s3, 9
    s_mul_i32 s{S_WB}, s{S_WV}, {WSZ}
    s_add_u32 s{S_WB}, s{S_WB}, {WREG}
    s_load_dwordx2 s[{S_DSK}:{S_DSK+1}], s[0:1], {KA['Dskip']}
    s_mul_i32 s{S_T0}, s{S_WV}, {64*9216}
    s_lshl_b32 s{S_T1}, s{S_CH}, 4
    s_add_u32 s{S_T0}, s{S_T0}, s{S_T1}
    s_add_u32 s{S_T0}, s{S_T0}, {WS_XT}
    s_mul_i32 s{S_T1}, s{S_WV}, 9216
    v_lshlrev_b32 v{V_SG}, 4, v{L}
    """)
    if not ONE: conv_dma(a)
    a(f"""
    v_and_b32 v30, 15, v{L}            ; col
    v_lshrrev_b32 v31, 4, v{L}         ; g
    v_and_b32 v32, 3, v{L}             ; c'
    v_bfe_u32 v33, v{L}, 2, 2          ; r'
    v_mul_u32_u24 v{V_F}, 4160, v33
    v_lshl_add_u32 v{V_F}, v32, 3, v{V_F}
    v_lshlrev_b32 v34, 4, v31
    v_sub_u32 v{V_F}, v{V_F}, v34
    v_add_u32 v{V_F}, {64 - 8 + O_UC}, v{V_F}
    v_add_u32 v{V_F}, {W}, v{V_F}
    v_mul_u32_u24 v{V_G}, 1280, v31
    v_lshl_add_u32 v{V_G}, v30, 4, v{V_G}
    v_add_u32 v{V_G}, {O_KP + 16}, v{V_G}
    v_add_u32 v{V_G}, {W}, v{V_G}
    v_mul_u32_u24 v{V_RAW}, 144, v{L}
    v_add_u32 v{V_UW}, {O_UC + 64}, v{V_SG}
    v_add_u32 v{V_UW}, {W}, v{V_UW}
    v_lshlrev_b32 v34, 6, v30
    v_lshl_add_u32 v34, v31, 3, v34    ; 2*(32col+4g)
    v_add_u32 v34, {W}, v34
    v_add_u32 v{V_EU}, {O_UC + 64}, v34
    v_add_u32 v{V_ES}, {O_SO}, v34
    v_add_u32 v{V_SR}, {W}, v{V_SG}
    v_add_u32 v{V_SR}, {O_SO}, v{V_SR}
    v_mul_u32_u24 v34, 1280, v31
    v_lshl_add_u32 v34, v30, 4, v34
    v_add_u32 v34, {O_KP}, v34
    v_add_u32 v34, {W}, v34
    v_mov_b32 v36, 0
    v_mov_b32 v37, 0
    v_mov_b32 v38, 0
    v_mov_b32 v39, 0
    ds_write_b128 v34, v[36:39]
    ds_write_b128 v34, v[36:39] offset:5120
    v_lshrrev_b32 v35, 2, v{L}
    v_and_b32 v35, 3, v35
    v_mul_u32_u24 v35, 4160, v35
    v_and_b32 v34, 3, v{L}
    v_lshl_add_u32 v35, v34, 4, v35
    v_add_u32 v35, {W}, v35
    ds_write_b128 v35, v[36:39] offset:{O_UC}
    """)
    if ONE:
        a("s_waitcnt vmcnt(0) lgkmcnt(0)\n s_barrier")
        k_one.OT(a, 9)
    else:
        a("s_waitcnt vmcnt(0) lgkmcnt(0)\n s_barrier")

def wait_k_first(a):
    import k_red, k_one
    a(f"""
    v_min_u32 v8, 8, v{L}
    v_add_u32 v8, s{S_CH}, v8
    v_lshlrev_b32 v8, 6, v8
    v_add_u32 v9, {F_K}, v8
    """)
    k_one.OT(a, 2)
    k_red.spin_until(a, 9, 1, 10, backoff=2, vt2=11)
    k_one.OT(a, 3)
    k_dma(a, S_WV, 0)

def u_copies(a, chl_reg, rounds):
    a(f"""
    s_lshl_b32 s55, s{chl_reg}, 4
    v_add_u32 v100, s55, v{V_RAW}
    v_subrev_u32 v101, 136, v100
    v_max_i32 v102, 0, v101
    """)
    for rd in rounds:
        b = 104 + 6*rd
        a(f"ds_read_b64 v[{b}:{b+1}], v{102 if rd == 0 else 101} offset:{rd*64*144}")
        a(f"ds_read_b128 v[{b+2}:{b+5}], v100 offset:{rd*64*144}")
    for k, rd in enumerate(rounds):
        b = 104 + 6*rd
        a(f"s_waitcnt lgkmcnt({min(15, 2*(len(rounds)-1-k) + 4*k)})")
        if rd == 0:
            a(f"v_cmp_eq_u32 vcc, 0, v{L}\n v_mov_b32 v103, 0\n s_nop 0\n v_cndmask_b32 v{b}, v{b}, v103, vcc\n v_cndmask_b32 v{b+1}, v{b+1}, v103, vcc")
        q = 128 + 12*(k % 2)
        a(f"""
        v_alignbit_b32 v{q}, v{b+1}, v{b}, 16
        v_alignbit_b32 v{q+1}, v{b+2}, v{b+1}, 16
        v_alignbit_b32 v{q+2}, v{b+3}, v{b+2}, 16
        v_alignbit_b32 v{q+3}, v{b+4}, v{b+3}, 16
        ds_write_b128 v{V_UW}, v[{b+2}:{b+5}] offset:{rd*1024}
        v_alignbit_b32 v{q+4}, v{b+2}, v{b+1}, 16
        v_alignbit_b32 v{q+5}, v{b+3}, v{b+2}, 16
        v_alignbit_b32 v{q+6}, v{b+4}, v{b+3}, 16
        v_alignbit_b32 v{q+7}, v{b+5}, v{b+4}, 16
        ds_write_b128 v{V_UW}, v[{q}:{q+3}] offset:{3*4160 + rd*1024}
        v_mov_b32 v{q+8}, v{b+1}
        v_mov_b32 v{q+9}, v{b+2}
        v_mov_b32 v{q+10}, v{b+3}
        v_mov_b32 v{q+11}, v{b+4}
        ds_write_b128 v{V_UW}, v[{q+4}:{q+7}] offset:{4160 + rd*1024}
        ds_write_b128 v{V_UW}, v[{q+8}:{q+11}] offset:{2*4160 + rd*1024}
        """)

AC = 196
def conv_mfma(a, kbuf_reg_off, pairs, bhs, vF, vG, extra=None):
    st = Stream(a)
    FB = [100, 148]
    need_i = sorted({i for i, nb in pairs}); need_n = sorted({nb - i for i, nb in pairs})
    def reads(p0):
        b = FB[p0 % 2]; it = []
        seq = []
        done = set()
        for (i, nb) in pairs:
            if ('G', nb - i) not in done: seq.append(('G', nb - i)); done.add(('G', nb - i))
            for bh in bhs:
                if ('F', i, bh) not in done: seq.append(('F', i, bh)); done.add(('F', i, bh))
        for x in seq:
            if x[0] == 'G':
                n_ = x[1]; r = b + 32 + 4*n_
                it.append(DS(f"ds_read_b128 v[{r}:{r+3}], v{vG} offset:{kbuf_reg_off + 16*(16*n_ - p0 + 15)}", (p0, x)))
            else:
                i, bh = x[1], x[2]; r = b + 4*(2*i + bh)
                m2 = 64*p0 + 1024*i + 32*bh
                it.append(DS(f"ds_read_b64_tr_b16 v[{r}:{r+1}], v{vF} offset:{m2 + 8}", (p0, x)))
                it.append(DS(f"ds_read_b64_tr_b16 v[{r+2}:{r+3}], v{vF} offset:{m2}", (p0, x)))
        return it
    for it in reads(0): st.put(it)
    seen = set(); cnt = [0]
    for p0 in range(16):
        b = FB[p0 % 2]
        nxt = reads(p0 + 1) if p0 < 15 else []
        ms = [(i, nb, bh) for (i, nb) in pairs for bh in bhs]
        per = -(-len(nxt) // len(ms))
        for (i, nb, bh) in ms:
            st.wait_lg([(p0, ('G', nb - i)), (p0, ('F', i, bh))])
            c_ = vr(AC + 4*(2*nb + bh), 4)
            first = (nb, bh) not in seen; seen.add((nb, bh))
            a(f"v_mfma_f32_16x16x32_f16 {c_}, {vr(b + 4*(2*i+bh), 4)}, {vr(b + 32 + 4*(nb-i), 4)}, {'0' if first else c_}")
            for _ in range(per):
                if nxt: st.put(nxt.pop(0))
            cnt[0] += 1
            if extra and cnt[0] % XSTEP == 0: a(extra.pop(0))
        while nxt: st.put(nxt.pop(0))
    if extra:
        for x in extra: a(x)

def conv_epilogue(a, groups, vEU, vES):
    for k, (nb, bh) in enumerate(groups):
        a(f"ds_read_b64 v[{100 + 2*k}:{101 + 2*k}], v{vEU} offset:{2*(512*nb + 16*bh)}")
    a("s_waitcnt lgkmcnt(0)")
    def ops(k, nb, bh, t):
        x = AC + 4*(2*nb + bh); u = 100 + 2*k
        return [
            f"v_pk_mul_f32 v[{x}:{x+1}], v[{x}:{x+1}], v[118:119]",
            f"v_pk_mul_f32 v[{x+2}:{x+3}], v[{x+2}:{x+3}], v[118:119]",
            f"v_fma_mix_f32 v{t}, v{u}, v116, 0 op_sel_hi:[1,0,0]",
            f"v_fma_mix_f32 v{t+1}, v{u}, v116, 0 op_sel:[1,0,0] op_sel_hi:[1,0,0]",
            f"v_fma_mix_f32 v{t+2}, v{u+1}, v116, 0 op_sel_hi:[1,0,0]",
            f"v_fma_mix_f32 v{t+3}, v{u+1}, v116, 0 op_sel:[1,0,0] op_sel_hi:[1,0,0]",
            f"v_cvt_pk_bf16_f32 v{t+4}, v{x}, v{x+1}",
            f"v_cvt_pk_bf16_f32 v{t+5}, v{x+2}, v{x+3}",
            f"v_cvt_pk_bf16_f32 v{t+6}, v{t}, v{t+1}",
            f"v_cvt_pk_bf16_f32 v{t+7}, v{t+2}, v{t+3}",
            f"v_lshlrev_b32 v{x}, 16, v{t+4}",
            f"v_and_b32 v{x+1}, 0xffff0000, v{t+4}",
            f"v_lshlrev_b32 v{x+2}, 16, v{t+5}",
            f"v_and_b32 v{x+3}, 0xffff0000, v{t+5}",
            f"v_lshlrev_b32 v{t}, 16, v{t+6}",
            f"v_and_b32 v{t+1}, 0xffff0000, v{t+6}",
            f"v_lshlrev_b32 v{t+2}, 16, v{t+7}",
            f"v_and_b32 v{t+3}, 0xffff0000, v{t+7}",
            f"v_pk_add_f32 v[{x}:{x+1}], v[{x}:{x+1}], v[{t}:{t+1}]",
            f"v_pk_add_f32 v[{x+2}:{x+3}], v[{x+2}:{x+3}], v[{t+2}:{t+3}]",
            f"v_cvt_pk_bf16_f32 v{t+4}, v{x}, v{x+1}",
            f"v_cvt_pk_bf16_f32 v{t+5}, v{x+2}, v{x+3}",
            f"ds_write_b64 v{vES}, v[{t+4}:{t+5}] offset:{2*(512*nb + 16*bh)}"]
    W = min(4, len(groups))
    for k in range(0, len(groups), W):
        ss = [ops(k + j, *groups[k + j], 120 + 8*j) for j in range(W) if k + j < len(groups)]
        while any(ss):
            for s_ in ss:
                if s_: a(s_.pop(0))

def scalars(a, c):
    a(f"""
    s_lshl_b32 s56, {c}, 1
    s_and_b32 s57, s56, 0xfffffffc
    s_load_dword s59, s[{S_DSK}:{S_DSK+1}], s57
    s_lshl_b32 s56, {c}, 2
    s_add_u32 s56, s56, {WS_KS}
    """)
    if ONE: a(f"v_mov_b32 v61, s56\n buffer_load_dword v61, v61, s[{S_WS}:{S_WS+3}], 0 offen sc1")
    else: a(f"s_load_dword s58, s[{S_WSP}:{S_WSP+1}], s56")
    a(f"s_bitcmp1_b32 {c}, 0\n s_cselect_b32 s60, 0, 16")
def scalars_use(a):
    a(f"""
    s_waitcnt lgkmcnt(0)
    s_lshl_b32 s59, s59, s60
    s_and_b32 s59, s59, 0xffff0000
    v_mov_b32 v116, s59
    """)
    if ONE: a("v_mov_b32 v118, v61\n v_mov_b32 v119, v61")
    else: a("v_mov_b32 v118, s58\n v_mov_b32 v119, s58")

def conv_channel(a, chl_reg, buf, nxt_reg, store_flags='', extra=None, first=None):
    c = 's54'
    fs = [0]
    def F():
        if FINE:
            a(f"s_memtime s[{70+2*fs[0]}:{71+2*fs[0]}]"); fs[0] += 1
    F()
    a(f"s_add_u32 {c}, s{S_CH}, s{chl_reg}")
    if not first: scalars(a, c)
    u_copies(a, chl_reg, [0, 1, 2, 3])
    if first:
        first(a)
        scalars(a, c)
    a("s_waitcnt vmcnt(0) lgkmcnt(0)")
    if nxt_reg is not None: nxt_reg(a)
    F()
    conv_mfma(a, buf*5120, [(i, nb) for i in range(4) for nb in range(i, 4)], [0, 1], V_F, V_G, extra)
    F()
    scalars_use(a)
    a("s_nop 4")
    conv_epilogue(a, [(nb, bh) for nb in range(4) for bh in range(2)], V_EU, V_ES)
    a("s_waitcnt lgkmcnt(0)")
    for k in range(4): a(f"ds_read_b128 v[{152+4*k}:{155+4*k}], v{V_SR} offset:{1024*k}")
    a(f"s_lshl_b32 s55, {c}, 12\n s_add_u32 s55, s55, {WS_S}")
    a("s_waitcnt lgkmcnt(0)")
    for k in range(4):
        a(f"buffer_store_dwordx4 v[{152+4*k}:{155+4*k}], v{V_SG}, s[{S_WS}:{S_WS+3}], s55 offen offset:{1024*k} {store_flags}")
    F()

def conv_ninth(a, sflag, local=False):
    c = 's54'
    a(f"""
    s_add_u32 {c}, s{S_CH}, 8
    s_mov_b32 s64, 8
    s_sub_u32 s65, s{S_WB}, {WREG}
    v_subrev_u32 v28, s65, v{V_UW}
    s_lshl_b32 s66, s{S_WV}, 10
    v_add_u32 v28, s66, v28             ; + round*1024
    s_and_b32 s67, s{S_WV}, 1           ; bh
    s_lshl_b32 s68, s67, 5
    v_subrev_u32 v29, s65, v{V_F}
    v_add_u32 v29, s68, v29
    v_subrev_u32 v30, s65, v{V_G}
    v_subrev_u32 v31, s65, v{V_EU}
    v_add_u32 v31, s68, v31
    v_subrev_u32 v32, s65, v{V_ES}
    v_add_u32 v32, s68, v32
    v_subrev_u32 v33, s65, v{V_SR}
    v_add_u32 v33, s66, v33
    """)
    if local: local_scalars(a, c)
    else: scalars(a, c)
    a(f"""
    s_mul_i32 s55, s{S_WV}, {64*144}
    s_add_u32 s55, s55, 128             ; chl*16 = 8*16
    v_add_u32 v100, s55, v{V_RAW}
    v_subrev_u32 v101, 136, v100
    v_max_i32 v101, 0, v101
    s_waitcnt vmcnt(0)
    s_barrier
    ds_read_b64 v[104:105], v101
    ds_read_b128 v[106:109], v100
    v_cmp_eq_u32 vcc, 0, v0
    v_mov_b32 v103, 0
    s_waitcnt lgkmcnt(0)
    v_cndmask_b32 v104, v104, v103, vcc
    v_cndmask_b32 v105, v105, v103, vcc
    v_alignbit_b32 v128, v105, v104, 16
    v_alignbit_b32 v129, v106, v105, 16
    v_alignbit_b32 v130, v107, v106, 16
    v_alignbit_b32 v131, v108, v107, 16
    ds_write_b128 v28, v[106:109]
    v_alignbit_b32 v132, v106, v105, 16
    v_alignbit_b32 v133, v107, v106, 16
    v_alignbit_b32 v134, v108, v107, 16
    v_alignbit_b32 v135, v109, v108, 16
    ds_write_b128 v28, v[128:131] offset:{3*4160}
    v_mov_b32 v136, v105
    v_mov_b32 v137, v106
    v_mov_b32 v138, v107
    v_mov_b32 v139, v108
    ds_write_b128 v28, v[132:135] offset:4160
    ds_write_b128 v28, v[136:139] offset:{2*4160}
    s_waitcnt lgkmcnt(0)
    s_barrier
    s_cmp_ge_u32 s{S_WV}, 2
    s_cbranch_scc1 L_ninth_b
    """)
    for lab, pairs, nbs in ((None, [(0,0),(0,3),(1,3),(2,3),(3,3)], [0, 3]), ('L_ninth_b', [(0,1),(0,2),(1,1),(1,2),(2,2)], [1, 2])):
        if lab: a(f"{lab}:")
        conv_mfma(a, 0, pairs, [0], 29, 30)
        scalars_use(a)
        a("s_nop 4")
        conv_epilogue(a, [(nb, 0) for nb in nbs], 31, 32)
        if not lab: a("s_branch L_ninth_join")
    a("L_ninth_join:")
    a(f"""
    s_waitcnt lgkmcnt(0)
    s_barrier
    ds_read_b128 v[152:155], v33
    s_lshl_b32 s55, {c}, 12
    s_add_u32 s55, s55, {WS_S}
    s_add_u32 s55, s55, s66
    s_waitcnt lgkmcnt(0)
    buffer_store_dwordx4 v[152:155], v{V_SG}, s[{S_WS}:{S_WS+3}], s55 offen {sflag}
    """)

def gen_conv(a, stamp=None, sflag='', early=None):
    if LOCAL: return gen_conv_local(a, stamp, sflag, early)
    conv_setup(a, early)
    if early and not ONE: early(a)
    if stamp: stamp(a, 1)
    a(f"s_mov_b32 s62, s{S_WV}\n s_add_u32 s63, s{S_WV}, 4\n s_mov_b32 s64, 8")
    extra = None
    if PREF:
        a(f"""
        s_sub_u32 s3, s2, 192
        s_and_b32 s4, s3, 7
        s_lshr_b32 s4, s4, 1
        s_mul_i32 s4, s4, {1152*1152}
        s_lshr_b32 s5, s3, 3
        {'s_lshl_b32 s5, s5, 1' + chr(10) + '        s_and_b32 s6, s3, 1' + chr(10) + '        s_add_u32 s5, s5, s6' if W2HALF else ''}
        s_lshl_b32 s5, s5, 2
        s_add_u32 s5, s5, s{S_WV}
        s_mul_i32 s5, s5, {20736 if W2HALF else 41472}
        s_add_u32 s61, s4, s5
        """)
        extra = []
        if W1LATE < 6:
            a(f"""
            s_sub_u32 s3, s2, 192
            s_and_b32 s4, s3, 7
            s_lshr_b32 s4, s4, 1
            s_mul_i32 s4, s4, 2304
            s_lshr_b32 s5, s3, 3
            s_lshl_b32 s5, s5, 2
            s_add_u32 s5, s5, s{S_WV}
            s_mul_i32 s6, s5, {8*9216}
            s_add_u32 s48, s4, s6
            s_add_u32 s5, s5, 64
            s_min_u32 s5, s5, 71
            s_mul_i32 s6, s5, {8*9216}
            s_add_u32 s49, s4, s6
            v_lshrrev_b32 v62, 3, v{L}
            v_mul_u32_u24 v62, 9216, v62
            v_and_b32 v63, 7, v{L}
            v_lshl_add_u32 v62, v63, 4, v62
            """)
            for Q in range(W1LATE, 6):
                for sl in range(3):
                    for base, add in (('s48', 0), ('s48', 32*8*9216), ('s49', 0)):
                        extra.append(f"s_add_u32 s69, {base}, {add + sl*768 + Q*128}\n buffer_load_dwordx4 v[252:255], v62, s[8:11], s69 offen")
        sh_ = 20736 if W2HALF else 41472
        for k in range(-(-sh_//1024)):
            extra.append(f"s_add_u32 s69, s61, {min(k*1024, sh_-1024)}\n buffer_load_dwordx4 v[252:255], v{V_SG}, s[12:15], s69 offen")
    def after0(a):
        k_dma(a, 63, 1)
    if ONE and early: early(a)
    if extra:
        extra = [("s_waitcnt vmcnt(36)\n " if k >= 28 else "") + x for k, x in enumerate(extra)]
    if ONE and TLB2:
        a(f"""
        v_lshlrev_b32 v58, 21, v{L}
        v_add_u32 v58, {WS_S}, v58
        v_min_u32 v58, {WS_P + SZ_P - 64}, v58
        v_lshlrev_b32 v59, 20, v{L}
        """)
        t2 = [f"buffer_load_dword v255, v58, s[{S_WS}:{S_WS+3}], 0 offen", "buffer_load_dword v255, v59, s[28:31], 0 offen"]
        extra = t2 + (extra or [])
    conv_channel(a, 62, 0, after0, sflag, extra, wait_k_first if ONE else None)
    if stamp: stamp(a, 2)
    def third(a):
        lb = a.uid('L_nok')
        a(f"s_cmp_lg_u32 s{S_WV}, 0\n s_cbranch_scc1 {lb}")
        k_dma(a, 64, 0)
        a(f"{lb}:")
    conv_channel(a, 63, 1, third, sflag)
    if stamp: stamp(a, 3)
    conv_ninth(a, sflag)


def conv_addr(a):
    W = f"s{S_WB}"
    a(f"""
    v_and_b32 v{L}, 63, v0
    v_lshlrev_b32 v{V_SG}, 4, v{L}
    v_and_b32 v30, 15, v{L}
    v_lshrrev_b32 v31, 4, v{L}
    v_and_b32 v32, 3, v{L}
    v_bfe_u32 v33, v{L}, 2, 2
    v_mul_u32_u24 v{V_F}, 4160, v33
    v_lshl_add_u32 v{V_F}, v32, 3, v{V_F}
    v_lshlrev_b32 v34, 4, v31
    v_sub_u32 v{V_F}, v{V_F}, v34
    v_add_u32 v{V_F}, {64 - 8 + O_UC}, v{V_F}
    v_add_u32 v{V_F}, {W}, v{V_F}
    v_mul_u32_u24 v{V_G}, 1280, v31
    v_lshl_add_u32 v{V_G}, v30, 4, v{V_G}
    v_add_u32 v{V_G}, {O_KP + 16}, v{V_G}
    v_add_u32 v{V_G}, {W}, v{V_G}
    v_mul_u32_u24 v{V_RAW}, 144, v{L}
    v_add_u32 v{V_UW}, {O_UC + 64}, v{V_SG}
    v_add_u32 v{V_UW}, {W}, v{V_UW}
    v_lshlrev_b32 v34, 6, v30
    v_lshl_add_u32 v34, v31, 3, v34
    v_add_u32 v34, {W}, v34
    v_add_u32 v{V_EU}, {O_UC + 64}, v34
    v_add_u32 v{V_ES}, {O_SO}, v34
    v_add_u32 v{V_SR}, {W}, v{V_SG}
    v_add_u32 v{V_SR}, {O_SO}, v{V_SR}
    v_mov_b32 v36, 0
    v_mov_b32 v37, 0
    v_mov_b32 v38, 0
    v_mov_b32 v39, 0
    v_lshrrev_b32 v35, 2, v{L}
    v_and_b32 v35, 3, v35
    v_mul_u32_u24 v35, 4160, v35
    v_and_b32 v34, 3, v{L}
    v_lshl_add_u32 v35, v34, 4, v35
    v_add_u32 v35, {W}, v35
    ds_write_b128 v35, v[36:39] offset:{O_UC}
    """)

def local_scalars(a, c):
    a(f"""
    s_lshl_b32 s56, {c}, 1
    s_and_b32 s57, s56, 0xfffffffc
    s_load_dword s59, s[{S_DSK}:{S_DSK+1}], s57
    s_bitcmp1_b32 {c}, 0
    s_cselect_b32 s60, 0, 16
    """)

def local_channel(a, chl_reg, sflag, extra=None):
    c = 's54'
    a(f"s_add_u32 {c}, s{S_CH}, s{chl_reg}")
    local_scalars(a, c)
    u_copies(a, chl_reg, [0, 1, 2, 3])
    a("s_waitcnt lgkmcnt(0)")
    conv_mfma(a, 0, [(i, nb) for i in range(4) for nb in range(i, 4)], [0, 1], V_F, V_G, extra)
    scalars_use(a)
    a("s_nop 4")
    conv_epilogue(a, [(nb, bh) for nb in range(4) for bh in range(2)], V_EU, V_ES)
    a("s_waitcnt lgkmcnt(0)")
    for k in range(4): a(f"ds_read_b128 v[{152+4*k}:{155+4*k}], v{V_SR} offset:{1024*k}")
    a(f"s_lshl_b32 s55, {c}, 12\n s_add_u32 s55, s55, {WS_S}")
    a("s_waitcnt lgkmcnt(0)")
    for k in range(4):
        a(f"buffer_store_dwordx4 v[{152+4*k}:{155+4*k}], v{V_SG}, s[{S_WS}:{S_WS+3}], s55 offen offset:{1024*k} {sflag}")

def gen_conv_local(a, stamp, sflag, early):
    import k_one, k_red
    global O_KP, O_SO
    O_KP, O_SO = 17408, 22528
    k_one.ln_part(a, 0, 'c', None, 0)
    a(f"""
    s_sub_u32 s3, s2, 192             ; b'
    s_mul_i32 s{S_CH}, s3, 9
    s_mul_i32 s{S_WB}, s{S_WV}, {WSZ}
    s_add_u32 s{S_WB}, s{S_WB}, {WREG}
    s_load_dwordx2 s[{S_DSK}:{S_DSK+1}], s[0:1], {KA['Dskip']}
    """)
    extra = None
    if PREF:
        a(f"""
        s_and_b32 s42, s3, 7
        s_lshr_b32 s42, s42, 1
        s_mul_i32 s42, s42, {1152*1152}
        s_lshr_b32 s43, s3, 3
        s_lshl_b32 s43, s43, 2
        s_add_u32 s43, s43, s{S_WV}
        s_mul_i32 s43, s43, 41472
        s_add_u32 s42, s42, s43
        """)
        extra = [f"s_add_u32 s69, s42, {min(k*1024, 41472-1024)}\n buffer_load_dwordx4 v[252:255], v{V_SG}, s[12:15], s69 offen" for k in range(41)]
    k_one.kgen_srds(a)
    a(f"""
    v_and_b32 v30, 15, v{L}
    v_lshrrev_b32 v31, 4, v{L}
    v_mul_u32_u24 v34, 1280, v31
    v_lshl_add_u32 v34, v30, 4, v34
    v_add_u32 v34, {O_KP}, v34
    v_add_u32 v34, s{S_WB}, v34
    v_mov_b32 v36, 0
    v_mov_b32 v37, 0
    v_mov_b32 v38, 0
    v_mov_b32 v39, 0
    ds_write_b128 v34, v[36:39]
    """)
    def h_look(a):
        a("v_lshlrev_b32 v250, 6, v1")
        for k in range(4):
            a(f"v_add_u32 v251, {F_LN + k*4096}, v250")
            a(f"buffer_load_dword v{252+k}, v251, s[{S_WS}:{S_WS+3}], 0 offen sc1")
    def h_raw(a):
        a("s_waitcnt vmcnt(0)")
        for k in range(4):
            a(f"v_add_u32 v251, {F_LN + k*4096}, v250")
            k_red.spin_until(a, 251, 1, 252 + k, cache=True, backoff=2, vt2=249, stmp=(62, 63))
        a(f"""
        s_lshl_b32 s62, s{S_CH}, 4
        s_mul_i32 s63, s{S_WV}, {64*9216}
        s_add_u32 s62, s62, s63
        s_add_u32 s62, s62, {WS_XT}
        s_mul_i32 s63, s{S_WV}, 9216
        """)
        for m in range(9):
            a(f"""
            v_add_u32 v250, {64*m}, v1
            v_mul_u32_u24 v251, 7282, v250
            v_lshrrev_b32 v251, 16, v251
            v_mul_u32_u24 v252, 9, v251
            v_sub_u32 v252, v250, v252
            v_mul_u32_u24 v251, 9216, v251
            v_lshl_add_u32 v251, v252, 4, v251
            s_add_u32 m0, s63, {m*1024}
            s_nop 0
            buffer_load_dwordx4 v251, s[{S_WS}:{S_WS+3}], s62 offen sc1 lds
            """)
    k_one.kgen_local(a, f"s_add_u32 s54, s{S_CH}, s{S_WV}", S_WB, O_KP, mid=k_one.publish_ln_mid, hooks=[(0.45, h_look), (0.80, h_raw)])
    conv_addr(a)
    a("s_waitcnt vmcnt(0) lgkmcnt(0)\n s_barrier")
    if stamp: stamp(a, 1)
    a(f"s_mov_b32 s62, s{S_WV}")
    local_channel(a, 62, sflag, extra)
    if stamp: stamp(a, 2)
    a(f"s_add_u32 s68, s{S_CH}, 4")
    k_one.kgen_local(a, f"s_add_u32 s54, s68, s{S_WV}", S_WB, O_KP)
    conv_addr(a)
    a(f"s_add_u32 s63, s{S_WV}, 4")
    local_channel(a, 63, sflag)
    if stamp: stamp(a, 3)
    a("s_waitcnt lgkmcnt(0)\n s_barrier")
    a(f"s_cmp_ge_u32 s{S_WV}, 2\n s_cbranch_scc1 L_n9_idle")
    sub = Asm(); k_one.khalf_local(sub, f"s_add_u32 s54, s{S_CH}, 8", WREG, O_KP, 'n9')
    a(sub.text().replace('CONV_WSZ', str(WSZ)))
    a("s_branch L_n9_join")
    a("L_n9_idle:\n s_barrier")
    a("L_n9_join:")
    a(f"""
    v_mov_b32 v2, {WREG + 3*WSZ + O_SO}
    s_cmp_lg_u32 s{S_WV}, 0
    s_cbranch_scc1 L_n9_nosc
    ds_write_b32 v2, v61
    L_n9_nosc:
    s_waitcnt lgkmcnt(0)
    s_barrier
    ds_read_b32 v61, v2
    """)
    conv_addr_ninth = True
    conv_addr(a)
    a("s_waitcnt lgkmcnt(0)")
    conv_ninth(a, sflag, local=True)
    k_one.rebuild_srds(a)
    if early: early(a)
```

```python
from asmlib import *
from layout import *
from k_ln import srd

NLOG2E = 0xbfb8aa3b
def unpack(a, lo, hi, src):
    a(f"v_lshlrev_b32 v{lo}, 16, v{src}")
    a(f"v_and_b32 v{hi}, 0xffff0000, v{src}")

def final_math(a, M, B2, XS, SS, O, T):
    U = T + 16
    for e in range(8): unpack(a, T+2*e, T+2*e+1, M+e)
    for e in range(8): a(f"v_pk_add_f32 v[{T+2*e}:{T+2*e+1}], v[{T+2*e}:{T+2*e+1}], v[{B2+2*e}:{B2+2*e+1}]")
    for e in range(8): a(f"v_cvt_pk_bf16_f32 v{M+e}, v{T+2*e}, v{T+2*e+1}")
    for e in range(8): unpack(a, T+2*e, T+2*e+1, M+e)
    for e in range(16): a(f"v_mul_f32 v{U+e}, {hex(NLOG2E)}, v{T+e}")
    for e in range(16): a(f"v_exp_f32 v{U+e}, v{U+e}")
    for e in range(16): a(f"v_add_f32 v{U+e}, 1.0, v{U+e}")
    for e in range(16): a(f"v_rcp_f32 v{U+e}, v{U+e}")
    a("s_nop 0")
    for e in range(8): a(f"v_pk_mul_f32 v[{T+2*e}:{T+2*e+1}], v[{T+2*e}:{T+2*e+1}], v[{U+2*e}:{U+2*e+1}]")
    for e in range(8): a(f"v_cvt_pk_bf16_f32 v{M+e}, v{T+2*e}, v{T+2*e+1}")
    for e in range(8): unpack(a, T+2*e, T+2*e+1, M+e)
    for e in range(8): unpack(a, U+2*e, U+2*e+1, SS+e)
    for e in range(8): a(f"v_pk_mul_f32 v[{T+2*e}:{T+2*e+1}], v[{T+2*e}:{T+2*e+1}], v[{U+2*e}:{U+2*e+1}]")
    for e in range(8): a(f"v_cvt_pk_bf16_f32 v{M+e}, v{T+2*e}, v{T+2*e+1}")
    for e in range(8): unpack(a, T+2*e, T+2*e+1, M+e)
    for e in range(8): unpack(a, U+2*e, U+2*e+1, XS+e)
    for e in range(8): a(f"v_pk_add_f32 v[{T+2*e}:{T+2*e+1}], v[{T+2*e}:{T+2*e+1}], v[{U+2*e}:{U+2*e+1}]")
    for e in range(8): a(f"v_cvt_pk_bf16_f32 v{O+e}, v{T+2*e}, v{T+2*e+1}")

FIN_LDS = 4 * 4096
def gen_fin():
    a = Asm()
    a(f"""
    s_cmp_ge_u32 s2, 288
    s_cbranch_scc1 L_fin_done
    s_load_dwordx2 s[4:5], s[0:1], {KA['ws']}
    s_load_dwordx2 s[6:7], s[0:1], {KA['u']}
    s_load_dwordx2 s[28:29], s[0:1], {KA['out']}
    s_load_dwordx2 s[30:31], s[0:1], {KA['b2']}
    v_lshrrev_b32 v1, 6, v0
    v_and_b32 v2, 63, v0
    s_nop 0
    v_readfirstlane_b32 s3, v1
    s_waitcnt lgkmcnt(0)
    """)
    srd(a, 8, 4, 268435456); srd(a, 12, 6, 2359296); srd(a, 16, 28, 2359296); srd(a, 20, 30, 1152)
    a(f"""
    ; half-unit index hu = wg*4 + wave  in [0,1152): tb = hu&1, w = (hu>>1)&3, q = (hu>>3)%9, t = (hu>>3)/9
    s_lshl_b32 s24, s2, 2
    s_add_u32 s24, s24, s3
    s_and_b32 s25, s24, 1              ; tb
    s_bfe_u32 s26, s24, 0x20001        ; w
    s_lshr_b32 s27, s24, 3             ; t*9+q
    s_mul_i32 s32, s27, 7282
    s_lshr_b32 s32, s32, 16            ; t
    s_mul_i32 s33, s32, 9
    s_sub_u32 s33, s27, s33            ; q
    s_mul_i32 s34, s27, {12*16384}
    s_lshl_b32 s35, s26, 12
    s_add_u32 s34, s34, s35
    s_lshl_b32 s35, s25, 11
    s_add_u32 s34, s34, s35
    s_add_u32 s34, s34, {WS_P}
    v_lshlrev_b32 v3, 4, v2
    """)
    PB = 64
    for j in range(12):
        a(f"buffer_load_dwordx4 v[{PB+8*j}:{PB+8*j+3}], v3, s[8:11], s34 offen")
        a(f"buffer_load_dwordx4 v[{PB+8*j+4}:{PB+8*j+7}], v3, s[8:11], s34 offen offset:1024")
        if j < 11: a("s_add_u32 s34, s34, 16384")
    a(f"""
    s_lshr_b32 s35, s26, 1
    s_lshl_b32 s35, s35, 6
    s_lshl_b32 s36, s32, 7
    s_add_u32 s35, s35, s36
    s_lshl_b32 s36, s25, 5
    s_add_u32 s35, s35, s36            ; token0
    s_and_b32 s36, s26, 1
    s_lshl_b32 s36, s36, 5
    s_lshl_b32 s37, s33, 6
    s_add_u32 s36, s36, s37            ; ch0
    v_and_b32 v4, 31, v2
    v_lshrrev_b32 v5, 5, v2            ; hh
    v_add_u32 v6, s35, v4
    v_mul_u32_u24 v6, 1152, v6
    v_lshl_add_u32 v6, v5, 4, v6
    s_lshl_b32 s37, s36, 1
    v_add_u32 v6, s37, v6
    buffer_load_dwordx4 v[16:19], v6, s[12:15], 0 offen
    buffer_load_dwordx4 v[20:23], v6, s[12:15], 0 offen offset:32
    v_lshlrev_b32 v7, 4, v5
    v_add_u32 v7, s37, v7
    buffer_load_dwordx4 v[24:27], v7, s[20:23], 0 offen
    buffer_load_dwordx4 v[28:31], v7, s[20:23], 0 offen offset:32
    v_lshrrev_b32 v8, 2, v2
    v_add_u32 v8, s36, v8
    v_lshlrev_b32 v8, 12, v8
    v_and_b32 v9, 3, v2
    v_lshl_add_u32 v8, v9, 4, v8
    s_lshl_b32 s37, s35, 1
    s_add_u32 s37, s37, {WS_S}
    s_lshl_b32 s38, s3, 12
    s_mov_b32 m0, s38
    s_add_u32 s39, s37, {16*4096 - 1024}
    buffer_load_dwordx4 v8, s[8:11], s37 offen lds
    buffer_load_dwordx4 v8, s[8:11], s39 offen offset:1024 lds
    v_bfe_u32 v9, v2, 2, 2             ; r'
    v_lshl_add_u32 v9, v5, 3, v9       ; 8hh + r'
    v_lshlrev_b32 v9, 6, v9            ; *64 B
    v_bfe_u32 v10, v2, 4, 1
    v_lshl_add_u32 v9, v10, 5, v9      ; + 16 tokens*2B
    v_and_b32 v10, 3, v2
    v_lshl_add_u32 v9, v10, 3, v9
    v_add_u32 v9, s38, v9
    """)
    ACC = 32
    for j in range(12):
        a(f"s_waitcnt vmcnt({(11-j)*2 + 6})")
        for e in range(8):
            r = PB + 8*j + e
            if j == 0:
                unpack(a, ACC+2*e, ACC+2*e+1, r)
            else:
                a(f"v_lshlrev_b32 v48, 16, v{r}\n v_and_b32 v49, 0xffff0000, v{r}")
                a(f"v_pk_add_f32 v[{ACC+2*e}:{ACC+2*e+1}], v[{ACC+2*e}:{ACC+2*e+1}], v[48:49]")
    M = 50
    for e in range(8): a(f"v_cvt_pk_bf16_f32 v{M+e}, v{ACC+2*e}, v{ACC+2*e+1}")
    a("s_nop 1")
    for u in range(2):
        for i in range(2):
            a(f"v_permlane32_swap_b32 v{M+4*u+i}, v{M+4*u+2+i}")
    a("s_waitcnt vmcnt(0)")
    for u in range(2):
        a(f"ds_read_b64_tr_b16 v[{64+4*u}:{65+4*u}], v9 offset:{16*u*64}")
        a(f"ds_read_b64_tr_b16 v[{66+4*u}:{67+4*u}], v9 offset:{(16*u+4)*64}")
    for e in range(8): unpack(a, 72+2*e, 73+2*e, 24+e)
    a("s_waitcnt lgkmcnt(0)")
    final_math(a, M, 72, 16, 64, 88, 96)
    a("buffer_store_dwordx4 v[88:91], v6, s[16:19], 0 offen")
    a("buffer_store_dwordx4 v[92:95], v6, s[16:19], 0 offen offset:32")
    a("L_fin_done:\ns_endpgm")
    return a.text()
```

```python
import re
from asmlib import *
from layout import *
import k_kgen2
S_WS, S_WV = 16, 36
KG_WSZ = k_kgen2.KG_WSZ
_cache = {}
def _parts():
    if not _cache:
        b = Asm(); k_kgen2.gen_kgen(b, False)
        L = b.text().split('\n')
        f = lambda pat, start=0: next(i for i in range(start, len(L)) if pat in L[i])
        i_ld = f('s_lshl_b32 s42, s36, 8')
        i_ad = f('v_add_u32 v4, s37, v3')
        i_w = f('s_waitcnt vmcnt(0)', i_ad)
        i_cmb = f('s_cmp_eq_u32 s39, 0')
        smap = {36: 54, 37: 55, 38: 56, 39: 57, 40: 58, 41: 59, 42: 60, 43: 61, 48: 62, 49: 63, 50: 64, 51: 65,
                12: 20, 13: 21, 14: 22, 15: 23, 16: 24, 17: 25, 18: 26, 19: 27, 20: 28, 21: 29, 22: 30, 23: 31,
                24: 32, 25: 33, 26: 34, 27: 35, 28: 4, 29: 5, 30: 6, 31: 7}
        def remap(lines):
            t = '\n'.join(lines)
            t = re.sub(r'\bs\[(\d+):(\d+)\]', lambda m: f"s[{smap[int(m.group(1))]}:{smap[int(m.group(2))]}]", t)
            return re.sub(r'\bs(\d+)\b', lambda m: f"s{smap[int(m.group(1))]}", t)
        _cache['loads'] = remap(L[i_ld:i_ad]); _cache['addr'] = remap(L[i_ad:i_w]); _cache['body'] = remap(L[i_w+1:i_cmb])
    return _cache

def srds(a):
    a(f"""
    s_load_dwordx4 s[4:7], s[0:1], {KA['logA']}
    s_load_dwordx2 s[62:63], s[0:1], {KA['Cre']}
    s_load_dwordx2 s[64:65], s[0:1], {KA['Cim']}
    s_load_dwordx2 s[60:61], s[0:1], {KA['logdt']}
    s_waitcnt lgkmcnt(0)
    """)
    for base, src in ((20, 4), (24, 6), (28, 62), (32, 64)):
        a(f"s_mov_b32 s{base}, s{src}\n s_mov_b32 s{base+1}, s{src+1}\n s_mov_b32 s{base+2}, 147456\n s_mov_b32 s{base+3}, 0x20000")
    a("s_mov_b32 s4, s60\n s_mov_b32 s5, s61\n s_mov_b32 s6, 1152\n s_mov_b32 s7, 0x20000")

def select(a, chan_expr, ldsbase):
    a(chan_expr)
    a(f"""
    s_and_b32 s57, s{S_WV}, 1
    s_lshl_b32 s59, s57, 4
    s_mul_i32 s55, s{S_WV}, {KG_WSZ}
    s_add_u32 s55, s55, {ldsbase}
    v_and_b32 v1, 63, v0
    v_lshlrev_b32 v3, 2, v1
    """)
def loads(a): a(_parts()['loads'])
def addr(a): a(_parts()['addr'])
def body(a, hooks=()):
    L = [l for l in _parts()['body'].split('\n')]
    pos = sorted(((int(len(L)*f), k, h) for k, (f, h) in enumerate(hooks)), key=lambda x: (x[0], x[1]))
    pos = [(p, h) for p, k, h in pos]
    for i, l in enumerate(L):
        while pos and pos[0][0] <= i:
            pos.pop(0)[1](a)
        a(l)
    for _, h in pos: h(a)

def combine_and_store(a, tag, second_barrier=False):
    KA_ = 146
    a(f"""
    s_cmp_eq_u32 s57, 0
    s_cbranch_scc1 L_kh_first_{tag}
    ds_write_b128 v7, v[{KA_}:{KA_+3}]
    ds_write_b128 v7, v[{KA_+4}:{KA_+7}] offset:1024
    ds_write_b128 v7, v[{KA_+8}:{KA_+11}] offset:2048
    s_waitcnt lgkmcnt(0)
    s_barrier
    {'s_barrier' if second_barrier else ''}
    s_branch L_kh_done_{tag}
    L_kh_first_{tag}:
    s_barrier
    ds_read_b128 v[100:103], v7
    ds_read_b128 v[104:107], v7 offset:1024
    ds_read_b128 v[108:111], v7 offset:2048
    s_add_u32 s60, s55, 4096
    v_add_u32 v16, s60, v16
    v_add_u32 v20, s60, v20
    v_add_u32 v21, s60, v21
    v_add_u32 v22, s60, v22
    s_waitcnt lgkmcnt(0)
    {'s_barrier' if second_barrier else ''}
    """)
    for e in range(12): a(f"v_add_f32 v{KA_+e}, v{KA_+e}, v{100+e}")
    a(f"""
    v_cvt_pk_f16_f32 v100, v{KA_}, v{KA_+1}
    v_cvt_pk_f16_f32 v101, v{KA_+2}, v{KA_+3}
    ds_write_b64 v16, v[100:101]
    """)
    for r in range(4): a(f"ds_write_b32 v{8+r}, v{KA_+4+r}")
    for r in range(4): a(f"ds_write_b32 v{12+r}, v{KA_+8+r}")
    a("s_waitcnt lgkmcnt(0)")
    for sg, ve in enumerate([17, 18, 19]):
        c = 104 + 4*sg
        a(f"ds_read_b64 v[{c}:{c+1}], v{ve}")
        a(f"ds_read_b32 v{c+2}, v{ve} offset:8")
    a(f"""
    s_lshl_b32 s61, s54, 2
    s_add_u32 s61, s61, {WS_KS}
    v_mov_b32 v126, 0x7ffffff0
    v_cmp_eq_u32 vcc, 0, v1
    v_mov_b32 v127, s61
    s_nop 0
    v_cndmask_b32 v126, v126, v127, vcc
    buffer_store_dword v37, v126, s[{S_WS}:{S_WS+3}], 0 offen sc1
    s_waitcnt lgkmcnt(0)
    v_cvt_pk_f16_f32 v120, v104, v104
    v_cvt_pk_f16_f32 v121, v105, v106
    ds_write_b64 v20, v[120:121]
    v_cvt_pk_f16_f32 v124, v108, v108
    v_cvt_pk_f16_f32 v125, v108, v109
    v_cvt_pk_f16_f32 v126, v109, v109
    v_cvt_pk_f16_f32 v127, v110, v110
    ds_write_b128 v21, v[124:127]
    v_cvt_pk_f16_f32 v128, v112, v112
    v_mov_b32 v129, v128
    v_cvt_pk_f16_f32 v130, v112, v113
    v_cvt_pk_f16_f32 v131, v113, v113
    ds_write_b128 v22, v[128:131]
    v_mov_b32 v132, v131
    v_mov_b32 v133, v131
    v_cvt_pk_f16_f32 v134, v114, v114
    v_mov_b32 v135, v134
    ds_write_b128 v22, v[132:135] offset:1024
    v_lshlrev_b32 v2, 4, v1
    v_add_u32 v3, s60, v2
    s_waitcnt lgkmcnt(0)
    ds_read_b128 v[136:139], v3
    ds_read_b128 v[140:143], v3 offset:1024
    ds_read_b128 v[144:147], v3 offset:2048
    ds_read_b128 v[148:151], v3 offset:3072
    s_lshl_b32 s61, s54, 12
    s_add_u32 s61, s61, {WS_K}
    s_waitcnt lgkmcnt(0)
    buffer_store_dwordx4 v[136:139], v2, s[{S_WS}:{S_WS+3}], s61 offen sc1
    buffer_store_dwordx4 v[140:143], v2, s[{S_WS}:{S_WS+3}], s61 offen offset:1024 sc1
    buffer_store_dwordx4 v[144:147], v2, s[{S_WS}:{S_WS+3}], s61 offen offset:2048 sc1
    buffer_store_dwordx4 v[148:151], v2, s[{S_WS}:{S_WS+3}], s61 offen offset:3072 sc1
    L_kh_done_{tag}:
    s_nop 1
    """)

def publish_k(a, vlane=1):
    a(f"""
    s_lshl_b32 s60, s54, 6
    s_add_u32 s60, s60, {F_K}
    v_mov_b32 v162, s60
    v_mov_b32 v163, 0x7ffffff0
    v_cmp_eq_u32 vcc, 0, v{vlane}
    s_cmp_eq_u32 s57, 0
    s_cselect_b64 s[62:63], -1, 0
    s_and_b64 vcc, vcc, s[62:63]
    s_add_u32 s60, s{S_NONCE}, 1
    v_mov_b32 v164, s60
    v_cndmask_b32 v163, v163, v162, vcc
    buffer_store_dword v164, v163, s[{S_WS}:{S_WS+3}], 0 offen sc1
    """)
```

```python
from asmlib import *
from layout import *
from k_ln import srd
import struct
O_TB = 48*272
KG_WSZ = 17408
KG_LDS = 3*KG_WSZ
LOG2E = 0x3fb8aa3b
INV2PI = 0x3e22f983
def f32(x): return hex(struct.unpack('<I', struct.pack('<f', float(x)))[0])

def cmul_ops(d, x, y):
    return [f"v_pk_mul_f32 v[{d}:{d+1}], v[{x}:{x+1}], v[{y}:{y+1}] op_sel_hi:[1,0]",
            f"v_pk_fma_f32 v[{d}:{d+1}], v[{x}:{x+1}], v[{y}:{y+1}], v[{d}:{d+1}] op_sel:[1,1,0] op_sel_hi:[0,1,1] neg_lo:[1,0,0]"]
def rbf(a, dst, src):
    a(f"v_cvt_pk_bf16_f32 v{dst}, v{src}, v{src}")
    a(f"v_and_b32 v{dst}, 0xffff0000, v{dst}")

def interleave(a, streams):
    streams = [list(s) for s in streams if s]
    while any(streams):
        for s in streams:
            if s: a(s.pop(0))

def gen_kgen(a, stamp=False):
    L = 1
    fs = [0]
    def F():
        if stamp == 2:
            a(f"s_memtime s[{50+2*fs[0]}:{51+2*fs[0]}]"); fs[0] += 1
    F()
    a(f"""
    s_load_dwordx2 s[4:5], s[0:1], {KA['logA']}
    s_load_dwordx2 s[6:7], s[0:1], {KA['Aim']}
    s_load_dwordx2 s[28:29], s[0:1], {KA['Cre']}
    s_load_dwordx2 s[30:31], s[0:1], {KA['Cim']}
    s_load_dwordx2 s[32:33], s[0:1], {KA['logdt']}
    s_load_dwordx2 s[34:35], s[0:1], {KA['ws']}
    v_and_b32 v{L}, 63, v0
    s_sub_u32 s37, s3, 4
    s_lshl_b32 s36, s2, 1
    s_add_u32 s36, s36, s37
    s_add_u32 s38, s2, 512
    s_cmp_eq_u32 s3, 6
    s_cselect_b32 s36, s38, s36       ; channel
    s_cmp_ge_u32 s36, 576
    s_cbranch_scc1 L_kgen_done
    s_mul_i32 s37, s37, {KG_WSZ}
    v_lshlrev_b32 v3, 2, v{L}         ; lane*4
    s_waitcnt lgkmcnt(0)
    """)
    srd(a, 8, 4, 147456); srd(a, 12, 6, 147456); srd(a, 16, 28, 147456); srd(a, 20, 30, 147456); srd(a, 24, 34, 268435456)
    a(f"""
    s_lshl_b32 s38, s36, 8
    buffer_load_dword v64, v3, s[8:11], s38 offen
    buffer_load_dword v65, v3, s[12:15], s38 offen
    buffer_load_dword v66, v3, s[16:19], s38 offen
    buffer_load_dword v67, v3, s[20:23], s38 offen
    s_mov_b32 s40, s32
    s_mov_b32 s41, s33
    s_mov_b32 s42, 1152
    s_mov_b32 s43, 0x20000
    s_lshl_b32 s39, s36, 1
    v_mov_b32 v6, s39
    buffer_load_ushort v68, v6, s[40:43], 0 offen
    v_add_u32 v4, s37, v3
    v_and_b32 v30, 15, v{L}            ; i / b
    v_lshrrev_b32 v31, 4, v{L}         ; g
    v_mul_u32_u24 v5, 272, v30
    v_lshl_add_u32 v5, v31, 4, v5
    v_add_u32 v5, s37, v5
    v_lshlrev_b32 v34, 6, v31
    v_lshl_add_u32 v35, v30, 2, v34
    v_lshl_add_u32 v36, v30, 1, v34
    v_cmp_gt_u32 vcc, 2, v31
    """)
    for r in range(4):
        a(f"v_add_u32 v37, {r}, v35")
        a(f"v_add_u32 v38, {32*(r>>1) + (r&1)}, v36")
        a(f"v_cndmask_b32 v37, v38, v37, vcc")
        a(f"v_lshlrev_b32 v37, 2, v37")
        a(f"v_add_u32 v{8+r}, s37, v37")
    a(f"v_add_u32 v35, v34, v30\n v_cmp_eq_u32 s[44:45], 47, v{L}")
    for r in range(4):
        a(f"v_add_u32 v37, {256 + 16*r}, v35")
        a(f"v_mov_b32 v38, 400")
        a(f"v_cndmask_b32 v37, v38, v37, vcc")
        if r == 0:
            a(f"v_mov_b32 v38, 384\n s_nop 0\n v_cndmask_b32 v37, v37, v38, s[44:45]")
        a(f"v_lshlrev_b32 v37, 2, v37")
        a(f"v_add_u32 v{12+r}, s37, v37")
    def kpaddr(dst, oreg, extra):
        a(f"""
        v_and_b32 v37, 3, v{oreg}
        v_lshrrev_b32 v38, 2, v{oreg}
        v_lshlrev_b32 v37, 10, v37
        v_lshl_add_u32 v{dst}, v38, 4, v37
        """)
        if extra: a(f"v_add_u32 v{dst}, v{dst}, v{extra}")
    a("v_lshrrev_b32 v34, 1, v31\n v_lshl_add_u32 v34, v34, 4, v30\n v_and_b32 v35, 1, v31\n v_lshlrev_b32 v35, 3, v35")
    kpaddr(16, 34, 35)
    a(f"v_lshrrev_b32 v34, 1, v{L}\n v_add_u32 v34, 32, v34\n v_and_b32 v35, 1, v{L}\n v_lshlrev_b32 v35, 3, v35")
    kpaddr(20, 34, 35)
    a(f"v_add_u32 v34, 64, v{L}"); kpaddr(21, 34, None)
    a(f"v_lshlrev_b32 v34, 1, v{L}\n v_add_u32 v34, 128, v34"); kpaddr(22, 34, None)
    a(f"""
    v_lshlrev_b32 v34, 3, v{L}
    v_add_u32 v17, s37, v34
    v_add_u32 v18, 512, v17
    v_add_u32 v19, 1024, v17
    """)
    F()
    a("s_waitcnt vmcnt(0)")
    F()
    a(f"v_lshlrev_b32 v68, 16, v68\n v_mul_f32 v68, {hex(LOG2E)}, v68\n v_exp_f32 v68, v68\n s_nop 0")
    rbf(a, 68, 68)
    def prep(h):
        b = 70 + 8*h; o = []
        for k in range(4):
            o.append(f"v_lshlrev_b32 v{b+k}, 16, v{64+k}" if h == 0 else f"v_and_b32 v{b+k}, 0xffff0000, v{64+k}")
        o += [f"v_mul_f32 v{b}, {hex(LOG2E)}, v{b}", f"v_mul_f32 v{b+1}, v{b+1}, v68", f"v_exp_f32 v{b}, v{b}",
              f"v_mul_f32 v{b+2}, v{b+2}, v68", f"v_mul_f32 v{b+3}, v{b+3}, v68",
              f"v_cvt_pk_bf16_f32 v{b}, v{b}, v{b}", f"v_mul_f32 v{b+1}, {hex(INV2PI)}, v{b+1}",
              f"v_and_b32 v{b}, 0xffff0000, v{b}", f"v_mul_f32 v{b}, v{b}, v68", f"v_mul_f32 v{b}, {hex(0xbfb8aa3b)}, v{b}"]
        return o
    interleave(a, [prep(0), prep(1)])
    a("""
    v_max3_f32 v86, abs(v72), abs(v73), abs(v80)
    v_max_f32 v86, v86, abs(v81)
    s_nop 1
    v_max_f32_dpp v86, v86, v86 quad_perm:[1,0,3,2] row_mask:0xf bank_mask:0xf
    s_nop 1
    v_max_f32_dpp v86, v86, v86 quad_perm:[2,3,0,1] row_mask:0xf bank_mask:0xf
    s_nop 1
    v_max_f32_dpp v86, v86, v86 row_half_mirror row_mask:0xf bank_mask:0xf
    s_nop 1
    v_max_f32_dpp v86, v86, v86 row_mirror row_mask:0xf bank_mask:0xf
    s_nop 0
    v_mov_b32 v87, v86
    s_nop 1
    v_permlane16_swap_b32 v86, v87
    s_nop 1
    v_max_f32 v86, v86, v87
    v_mov_b32 v87, v86
    s_nop 1
    v_permlane32_swap_b32 v86, v87
    s_nop 1
    v_max_f32 v86, v86, v87
    v_max_f32 v86, 0x0d800000, v86
    v_min_f32 v86, 0x71800000, v86
    v_add_u32 v86, 0x7fffff, v86
    v_and_b32 v86, 0x7f800000, v86     ; sc
    v_sub_u32 v87, 0x7f000000, v86     ; 1/sc
    v_add_f32 v69, v86, v86
    v_mul_f32 v72, v72, v87
    v_mul_f32 v73, v73, v87
    v_mul_f32 v80, v80, v87
    v_mul_f32 v81, v81, v87
    """)
    F()
    def cexp_ops(d, zr, zi, p, t):
        return [f"v_mul_f32 v{t}, {f32(p)}, v{zr}", f"v_mul_f32 v{t+1}, {f32(p)}, v{zi}", f"v_exp_f32 v{t}, v{t}",
                f"v_fract_f32 v{t+1}, v{t+1}", "s_nop 0", f"v_cos_f32 v{d}, v{t+1}", f"v_sin_f32 v{d+1}, v{t+1}", "s_nop 0",
                f"v_mul_f32 v{d}, v{d}, v{t}", f"v_mul_f32 v{d+1}, v{d+1}, v{t}"]
    def Eb(h): return 100 + 20*h
    st = []
    for h in range(2):
        b = 70 + 8*h
        for k, (p, off) in enumerate([(1, 0), (8, 14), (128, 16)]):
            st.append(cexp_ops(Eb(h) + off, b, b+1, p, 140 + 2*(3*h + k)))
    interleave(a, st)
    def E(h, e): return Eb(h) + 2*(e-1)
    def E128(h): return Eb(h) + 16
    for lvl in ([(2,1,1)], [(3,2,1),(4,2,2)], [(5,4,1),(6,4,2),(7,4,3)]):
        ops = [cmul_ops(E(h, d), E(h, x), E(h, y)) for h in range(2) for (d, x, y) in lvl]
        for k in range(2):
            for o in ops: a(o[k])
        if len(ops) < 4: a("s_nop 0")
    F()
    KA_ = 88
    def G(h, aa): return (72 + 8*h) if aa == 0 else 140 + 30*h + 2*(aa-1)
    def Y(h, bb): return E(h, 8) if bb == 1 else (200 + 2*(bb-2) if h == 0 else None)
    def chainG(h):
        o = []
        for aa in range(1, 16): o.append(cmul_ops(G(h, aa), G(h, aa-1), E128(h)))
        return o
    def chainY(h):
        o = []; cur = E(h, 8)
        for bb in range(2, 16):
            d = 200 + 2*(bb-2); o.append(cmul_ops(d, cur, E(h, 8))); cur = d
        return o
    def lockstep(chains):
        n = max(len(c) for c in chains)
        for k in range(n):
            cur = [c[k] for c in chains if k < len(c)]
            for ph in range(2):
                for c in cur: a(c[ph])
            if len(cur) < 3: a("s_nop 0")
    lockstep([chainG(0), chainG(1), chainY(0)])
    items = []
    for aa in range(2):
        for e in range(8): items.append((8*aa + e, aa, e))
    for aa in range(2, 4):
        for e in range(4): items.append((16 + 4*(aa-2) + e, aa, 2*e))
    for aa in range(4, 8):
        for e in range(2): items.append((24 + 2*(aa-4) + e, aa, 4*e))
    for aa in range(8, 16): items.append((32 + aa - 8, aa, 0))
    items.append((40, 15, 8))
    def put(tab_off, row, src, neg, r):
        return [f"v_cvt_pk_f16_f32 v{r}, v{src}, {'-' if neg else ''}v{src+1}", f"ds_write_b32 v4, v{r} offset:{tab_off + row*272}"]
    for h in range(2):
        direct = [put(0, row, G(h, aa), True, 228 + (k % 4)) for k, (row, aa, e) in enumerate([x for x in items if x[2] == 0])]
        ys = []
        a("v_mov_b32 v232, 1.0\n v_mov_b32 v233, 0")
        ys.append(put(O_TB, 0, 232, False, 234))
        for bb in range(1, 16):
            src = E(h, 8) if bb == 1 else 200 + 2*(bb-2)
            ys.append(put(O_TB, bb, src, False, 234 + (bb % 4)))
        allp = direct + ys
        W_ = 8
        for k in range(0, len(allp), W_):
            grp = allp[k:k+W_]
            grp = [[g_[0].replace(g_[0].split()[1].rstrip(','), f"v{48+j}"), g_[1].rsplit(',', 1)[0] + f", v{48+j} offset:" + g_[1].split('offset:')[1]] for j, g_ in enumerate(grp)]
            for ph in range(2):
                for g_ in grp: a(g_[ph])
        prods = [x for x in items if x[2] != 0]
        ych = chainY(1) if h == 0 else []
        for k in range(0, len(prods), W_):
            grp = prods[k:k+W_]
            regs = [32 + 2*j for j in range(W_)]
            cm = [cmul_ops(regs[j], G(h, aa), E(h, e)) for j, (row, aa, e) in enumerate(grp)]
            extra = [ych.pop(0) for _ in range(min(4, len(ych)))]
            ex = [o for c in extra for o in c]
            def take():
                if ex: a(ex.pop(0))
            take()
            for j, c in enumerate(cm):
                a(c[0])
                if j == 3: take()
            take()
            for j, c in enumerate(cm):
                a(c[1])
                if j == 3: take()
            take()
            pp = [put(0, row, regs[j], True, 48 + j) for j, (row, aa, e) in enumerate(grp)]
            for j, p_ in enumerate(pp):
                a(p_[0])
                if j == 3: take()
            take()
            for j, p_ in enumerate(pp):
                a(p_[1])
                if j == 3: take()
            while ex:
                a("s_nop 1"); take()
        assert not ych
        a("s_waitcnt lgkmcnt(0)")
        F()
        for half in range(2):
            for kk in range(2):
                ks = 2*half + kk
                fb = 100 + 16*kk if h == 1 else 40 - 8 + 16*kk
                a(f"ds_read_b128 v[{fb}:{fb+3}], v5 offset:{O_TB + ks*64}")
                for t in range(3):
                    a(f"ds_read_b128 v[{fb+4+4*t}:{fb+7+4*t}], v5 offset:{t*16*272 + ks*64}")
            for kk in range(2):
                ks = 2*half + kk
                fb = 100 + 16*kk if h == 1 else 32 + 16*kk
                a(f"s_waitcnt lgkmcnt({4 if kk == 0 else 0})")
                for t in range(3):
                    c_ = vr(KA_ + 4*t, 4)
                    src = '0' if (h == 0 and ks == 0) else c_
                    a(f"v_mfma_f32_16x16x32_f16 {c_}, {vr(fb+4+4*t, 4)}, {vr(fb, 4)}, {src}")
    a("s_nop 7")
    F()
    a(f"""
    s_lshl_b32 s38, s36, 12
    s_add_u32 s38, s38, {WS_K}
    v_cvt_pk_f16_f32 v100, v{KA_}, v{KA_+1}
    v_cvt_pk_f16_f32 v101, v{KA_+2}, v{KA_+3}
    buffer_store_dwordx2 v[100:101], v16, s[24:27], s38 offen
    """)
    for r in range(4): a(f"ds_write_b32 v{8+r}, v{KA_+4+r}")
    for r in range(4): a(f"ds_write_b32 v{12+r}, v{KA_+8+r}")
    a("s_waitcnt lgkmcnt(0)")
    for sg, ve in enumerate([17, 18, 19]):
        b = 104 + 4*sg
        a(f"ds_read_b64 v[{b}:{b+1}], v{ve}")
        a(f"ds_read_b32 v{b+2}, v{ve} offset:8")
    a(f"""
    s_lshl_b32 s39, s36, 2
    s_add_u32 s39, s39, {WS_KS}
    v_mov_b32 v126, 0
    v_cmp_eq_u32 vcc, 0, v{L}
    s_and_saveexec_b64 s[44:45], vcc
    buffer_store_dword v69, v126, s[24:27], s39 offen
    s_mov_b64 exec, s[44:45]
    s_waitcnt lgkmcnt(0)
    v_cvt_pk_f16_f32 v120, v104, v104
    v_cvt_pk_f16_f32 v121, v105, v106
    buffer_store_dwordx2 v[120:121], v20, s[24:27], s38 offen
    v_cvt_pk_f16_f32 v124, v108, v108
    v_cvt_pk_f16_f32 v125, v108, v109
    v_cvt_pk_f16_f32 v126, v109, v109
    v_cvt_pk_f16_f32 v127, v110, v110
    buffer_store_dwordx4 v[124:127], v21, s[24:27], s38 offen
    v_cvt_pk_f16_f32 v128, v112, v112
    v_mov_b32 v129, v128
    v_cvt_pk_f16_f32 v130, v112, v113
    v_cvt_pk_f16_f32 v131, v113, v113
    buffer_store_dwordx4 v[128:131], v22, s[24:27], s38 offen
    v_mov_b32 v132, v131
    v_mov_b32 v133, v131
    v_cvt_pk_f16_f32 v134, v114, v114
    v_mov_b32 v135, v134
    buffer_store_dwordx4 v[132:135], v22, s[24:27], s38 offen offset:1024
    """)
    if stamp == 2:
        F()
        a('s_waitcnt vmcnt(0)')
        F()
        a('s_waitcnt lgkmcnt(0)')
        for k in range(12): a(f'v_mov_b32 v{100+k}, s{50+2*k}')
        a(f's_lshl_b32 s20, s36, 6\n s_add_u32 s20, s20, {WS_DBG + 0x50000}\n v_mov_b32 v52, s20')
        for k in range(0, 12, 4): a(f'buffer_store_dwordx4 v[{100+k}:{103+k}], v52, s[24:27], 0 offen offset:{4*k}')
    if stamp:
        a(f"""
        s_waitcnt vmcnt(0)
        s_memrealtime s[46:47]
        s_waitcnt lgkmcnt(0)
        v_mov_b32 v50, s44
        v_mov_b32 v51, s46
        s_lshl_b32 s20, s2, 3
        s_add_u32 s20, s20, {WS_DBG + 0x40000 + 2048}
        v_mov_b32 v52, s20
        buffer_store_dwordx2 v[50:51], v52, s[24:27], 0 offen
        """)
    a('L_kgen_done:\ns_endpgm')
```

```python
from asmlib import *
from layout import *
from k_ln import srd
from k_kgen import cmul_ops, rbf, interleave, f32, LOG2E, INV2PI
O_TB = 41*272 + 112
KG_WSZ = ((O_TB + 16*272 + 15)//16)*16 + 7*272
KG_WSZ = (KG_WSZ + 255) & ~255
KG_LDS = 6*KG_WSZ

def gen_kgen(a, stamp=False):
    L = 1
    a(f"""
    s_load_dwordx8 s[4:11], s[0:1], {KA['logA']}
    s_load_dwordx2 s[32:33], s[0:1], {KA['logdt']}
    s_load_dwordx2 s[34:35], s[0:1], {KA['ws']}
    v_and_b32 v{L}, 63, v0
    s_sub_u32 s37, s3, 4              ; 0..5
    s_lshr_b32 s38, s37, 1            ; pair
    s_and_b32 s39, s37, 1             ; h
    s_lshl_b32 s36, s2, 1
    s_add_u32 s36, s36, s38
    s_add_u32 s40, s2, 512
    s_cmp_eq_u32 s38, 2
    s_cselect_b32 s36, s40, s36       ; channel
    s_cmp_ge_u32 s36, 576
    s_cbranch_scc1 L_kgen_done
    s_mul_i32 s37, s37, {KG_WSZ}
    s_lshl_b32 s41, s39, 4            ; 16 h
    v_lshlrev_b32 v3, 2, v{L}         ; lane*4
    s_waitcnt lgkmcnt(0)
    s_mov_b32 s12, s4
    s_mov_b32 s13, s5
    s_mov_b32 s14, 147456
    s_mov_b32 s15, 0x20000
    s_mov_b32 s16, s6
    s_mov_b32 s17, s7
    s_mov_b32 s18, 147456
    s_mov_b32 s19, 0x20000
    s_mov_b32 s20, s8
    s_mov_b32 s21, s9
    s_mov_b32 s22, 147456
    s_mov_b32 s23, 0x20000
    s_mov_b32 s24, s10
    s_mov_b32 s25, s11
    s_mov_b32 s26, 147456
    s_mov_b32 s27, 0x20000
    s_mov_b32 s28, s32
    s_mov_b32 s29, s33
    s_mov_b32 s30, 1152
    s_mov_b32 s31, 0x20000
    s_mov_b32 s44, s34
    s_mov_b32 s45, s35
    s_mov_b32 s46, 268435456
    s_mov_b32 s47, 0x20000
    s_lshl_b32 s42, s36, 8
    buffer_load_dword v32, v3, s[12:15], s42 offen
    buffer_load_dword v33, v3, s[16:19], s42 offen
    buffer_load_dword v34, v3, s[20:23], s42 offen
    buffer_load_dword v35, v3, s[24:27], s42 offen
    s_lshl_b32 s43, s36, 1
    v_mov_b32 v6, s43
    buffer_load_ushort v36, v6, s[28:31], 0 offen
    v_add_u32 v4, s37, v3
    v_and_b32 v30, 15, v{L}            ; i / b
    v_lshrrev_b32 v31, 4, v{L}         ; g
    v_mul_u32_u24 v5, 272, v30
    v_lshl_add_u32 v5, v31, 4, v5
    v_add_u32 v5, s37, v5
    v_lshlrev_b32 v7, 4, v{L}
    s_or_b32 s48, s39, 0
    s_sub_u32 s49, 1, s39
    s_mul_i32 s49, s49, {KG_WSZ}
    s_add_u32 s49, s49, s37
    v_add_u32 v7, s49, v7
    v_lshlrev_b32 v24, 6, v31
    v_lshl_add_u32 v25, v30, 2, v24
    v_lshl_add_u32 v26, v30, 1, v24
    v_cmp_gt_u32 vcc, 2, v31
    """)
    for r in range(4):
        a(f"v_add_u32 v27, {r}, v25")
        a(f"v_add_u32 v28, {32*(r>>1) + (r&1)}, v26")
        a(f"v_cndmask_b32 v27, v28, v27, vcc")
        a(f"v_lshlrev_b32 v27, 2, v27")
        a(f"v_add_u32 v{8+r}, s37, v27")
    a(f"v_add_u32 v25, v24, v30\n v_cmp_eq_u32 s[50:51], 47, v{L}")
    for r in range(4):
        a(f"v_add_u32 v27, {256 + 16*r}, v25")
        a(f"v_mov_b32 v28, 400")
        a(f"v_cndmask_b32 v27, v28, v27, vcc")
        if r == 0:
            a(f"v_mov_b32 v28, 384\n s_nop 0\n v_cndmask_b32 v27, v27, v28, s[50:51]")
        a(f"v_lshlrev_b32 v27, 2, v27")
        a(f"v_add_u32 v{12+r}, s37, v27")
    def kpaddr(dst, oreg, extra):
        a(f"""
        v_and_b32 v27, 3, v{oreg}
        v_lshrrev_b32 v28, 2, v{oreg}
        v_lshlrev_b32 v27, 10, v27
        v_lshl_add_u32 v{dst}, v28, 4, v27
        """)
        if extra: a(f"v_add_u32 v{dst}, v{dst}, v{extra}")
    a("v_lshrrev_b32 v24, 1, v31\n v_lshl_add_u32 v24, v24, 4, v30\n v_and_b32 v25, 1, v31\n v_lshlrev_b32 v25, 3, v25")
    kpaddr(16, 24, 25)
    a(f"v_lshrrev_b32 v24, 1, v{L}\n v_add_u32 v24, 32, v24\n v_and_b32 v25, 1, v{L}\n v_lshlrev_b32 v25, 3, v25")
    kpaddr(20, 24, 25)
    a(f"v_add_u32 v24, 64, v{L}"); kpaddr(21, 24, None)
    a(f"v_lshlrev_b32 v24, 1, v{L}\n v_add_u32 v24, 128, v24"); kpaddr(22, 24, None)
    a(f"""
    v_lshlrev_b32 v24, 3, v{L}
    v_add_u32 v17, s37, v24
    v_add_u32 v18, 512, v17
    v_add_u32 v19, 1024, v17
    s_waitcnt vmcnt(0)
    v_lshlrev_b32 v36, 16, v36
    v_mul_f32 v36, {hex(LOG2E)}, v36
    v_exp_f32 v36, v36
    v_lshrrev_b32 v38, s41, v32
    v_lshrrev_b32 v39, s41, v33
    v_lshrrev_b32 v40, s41, v34
    v_lshrrev_b32 v41, s41, v35
    v_cvt_pk_bf16_f32 v36, v36, v36
    v_lshlrev_b32 v38, 16, v38
    v_lshlrev_b32 v39, 16, v39
    v_lshlrev_b32 v40, 16, v40
    v_lshlrev_b32 v41, 16, v41
    v_and_b32 v36, 0xffff0000, v36     ; dt
    v_lshlrev_b32 v42, 16, v34
    v_and_b32 v43, 0xffff0000, v34
    v_lshlrev_b32 v44, 16, v35
    v_and_b32 v45, 0xffff0000, v35
    v_mul_f32 v38, {hex(LOG2E)}, v38
    v_max3_f32 v42, abs(v42), abs(v43), abs(v44)
    v_exp_f32 v38, v38
    v_max_f32 v42, v42, abs(v45)
    v_mul_f32 v39, v39, v36
    v_mul_f32 v42, v42, v36
    v_cvt_pk_bf16_f32 v38, v38, v38
    v_mul_f32 v40, v40, v36
    v_mul_f32 v41, v41, v36
    v_max_f32_dpp v42, v42, v42 quad_perm:[1,0,3,2] row_mask:0xf bank_mask:0xf
    v_and_b32 v38, 0xffff0000, v38
    v_mul_f32 v39, {hex(INV2PI)}, v39
    v_max_f32_dpp v42, v42, v42 quad_perm:[2,3,0,1] row_mask:0xf bank_mask:0xf
    v_mul_f32 v38, v38, v36
    v_mul_f32 v38, {hex(0xbfb8aa3b)}, v38
    v_max_f32_dpp v42, v42, v42 row_half_mirror row_mask:0xf bank_mask:0xf
    s_nop 1
    v_max_f32_dpp v42, v42, v42 row_mirror row_mask:0xf bank_mask:0xf
    s_nop 0
    v_mov_b32 v43, v42
    s_nop 1
    v_permlane16_swap_b32 v42, v43
    s_nop 1
    v_max_f32 v42, v42, v43
    v_mov_b32 v43, v42
    s_nop 1
    v_permlane32_swap_b32 v42, v43
    s_nop 1
    v_max_f32 v42, v42, v43
    v_max_f32 v42, 0x0d800000, v42
    v_min_f32 v42, 0x71800000, v42
    v_add_u32 v42, 0x7fffff, v42
    v_and_b32 v42, 0x7f800000, v42     ; sc
    v_sub_u32 v43, 0x7f000000, v42     ; 1/sc
    v_add_f32 v37, v42, v42
    v_mul_f32 v40, v40, v43
    v_mul_f32 v41, v41, v43
    """)
    zr, zi, X0 = 38, 39, 40
    EB = 46
    E = lambda e: EB + 2*(e-1)
    E128 = EB + 16
    def cexp_ops(d, p, t):
        return [f"v_mul_f32 v{t}, {f32(p)}, v{zr}", f"v_mul_f32 v{t+1}, {f32(p)}, v{zi}", f"v_exp_f32 v{t}, v{t}",
                f"v_fract_f32 v{t+1}, v{t+1}", "s_nop 0", f"v_cos_f32 v{d}, v{t+1}", f"v_sin_f32 v{d+1}, v{t+1}", "s_nop 0",
                f"v_mul_f32 v{d}, v{d}, v{t}", f"v_mul_f32 v{d+1}, v{d+1}, v{t}"]
    interleave(a, [cexp_ops(E(1), 1, 122), cexp_ops(E(8), 8, 124), cexp_ops(E128, 128, 126)])
    G = lambda aa: X0 if aa == 0 else 64 + 2*(aa-1)
    Yr = lambda bb: E(8) if bb == 1 else 94 + 2*(bb-2)
    cG = [cmul_ops(G(aa), G(aa-1), E128) for aa in range(1, 16)]
    cY = [cmul_ops(Yr(bb), Yr(bb-1), E(8)) for bb in range(2, 16)]
    cE = [cmul_ops(E(d), E(x), E(y)) for (d, x, y) in [(2,1,1),(3,2,1),(4,2,2),(5,4,1),(6,4,2),(7,4,3)]]
    n = 15
    for k in range(n):
        cur = [c[k] for c in (cG, cY, cE) if k < len(c)]
        for ph in range(2):
            for c in cur: a(c[ph])
        if len(cur) < 3: a("s_nop 0")
    items = []
    for aa in range(2):
        for e in range(8): items.append((8*aa + e, aa, e))
    for aa in range(2, 4):
        for e in range(4): items.append((16 + 4*(aa-2) + e, aa, 2*e))
    for aa in range(4, 8):
        for e in range(2): items.append((24 + 2*(aa-4) + e, aa, 4*e))
    for aa in range(8, 16): items.append((32 + aa - 8, aa, 0))
    items.append((40, 15, 8))
    def put(tab_off, row, src, neg, r):
        return [f"v_cvt_pk_f16_f32 v{r}, v{src}, {'-' if neg else ''}v{src+1}", f"ds_write_b32 v4, v{r} offset:{tab_off + row*272}"]
    a("v_mov_b32 v158, 1.0\n v_mov_b32 v159, 0")
    plain = [(0, row, G(aa), True) for (row, aa, e) in items if e == 0] + [(O_TB, 0, 158, False)] + [(O_TB, bb, Yr(bb), False) for bb in range(1, 16)]
    prods = [x for x in items if x[2] != 0]
    W_ = 4
    pi = 0
    for k in range(0, len(prods), W_):
        grp = prods[k:k+W_]
        regs = [122 + 2*j for j in range(W_)]
        cm = [cmul_ops(regs[j], G(aa), E(e)) for j, (row, aa, e) in enumerate(grp)]
        ex = plain[pi:pi+5]; pi += 5
        exo = [put(t_, r_, s_, n_, 138 + j) for j, (t_, r_, s_, n_) in enumerate(ex)]
        for c in cm: a(c[0])
        for o in exo: a(o[0])
        for c in cm: a(c[1])
        for o in exo: a(o[1])
        pp = [put(0, row, regs[j], True, 130 + j) for j, (row, aa, e) in enumerate(grp)]
        for p_ in pp: a(p_[0])
        a("s_nop 0")
        for p_ in pp: a(p_[1])
    for (t_, r_, s_, n_) in plain[pi:]:
        for o in put(t_, r_, s_, n_, 138): a(o)
    a("s_waitcnt lgkmcnt(0)")
    KA_ = 146
    for half in range(2):
        for kk in range(2):
            ks = 2*half + kk
            fb = 64 + 16*kk
            a(f"ds_read_b128 v[{fb}:{fb+3}], v5 offset:{O_TB + ks*64}")
            for t in range(3):
                a(f"ds_read_b128 v[{fb+4+4*t}:{fb+7+4*t}], v5 offset:{t*16*272 + ks*64}")
        for kk in range(2):
            ks = 2*half + kk
            fb = 64 + 16*kk
            a(f"s_waitcnt lgkmcnt({4 if kk == 0 else 0})")
            for t in range(3):
                c_ = vr(KA_ + 4*t, 4)
                a(f"v_mfma_f32_16x16x32_f16 {c_}, {vr(fb+4+4*t, 4)}, {vr(fb, 4)}, {'0' if ks == 0 else c_}")
    a("s_nop 7")
    a(f"""
    s_cmp_eq_u32 s39, 0
    s_cbranch_scc1 L_kg_first
    ds_write_b128 v7, v[{KA_}:{KA_+3}]
    ds_write_b128 v7, v[{KA_+4}:{KA_+7}] offset:1024
    ds_write_b128 v7, v[{KA_+8}:{KA_+11}] offset:2048
    s_waitcnt lgkmcnt(0)
    s_barrier
    s_endpgm
    L_kg_first:
    s_barrier
    ds_read_b128 v[100:103], v7
    ds_read_b128 v[104:107], v7 offset:1024
    ds_read_b128 v[108:111], v7 offset:2048
    s_lshl_b32 s42, s36, 12
    s_add_u32 s42, s42, {WS_K}
    s_waitcnt lgkmcnt(0)
    """)
    for e in range(12): a(f"v_add_f32 v{KA_+e}, v{KA_+e}, v{100+e}")
    a(f"""
    v_cvt_pk_f16_f32 v100, v{KA_}, v{KA_+1}
    v_cvt_pk_f16_f32 v101, v{KA_+2}, v{KA_+3}
    buffer_store_dwordx2 v[100:101], v16, s[44:47], s42 offen
    """)
    for r in range(4): a(f"ds_write_b32 v{8+r}, v{KA_+4+r}")
    for r in range(4): a(f"ds_write_b32 v{12+r}, v{KA_+8+r}")
    a("s_waitcnt lgkmcnt(0)")
    for sg, ve in enumerate([17, 18, 19]):
        b = 104 + 4*sg
        a(f"ds_read_b64 v[{b}:{b+1}], v{ve}")
        a(f"ds_read_b32 v{b+2}, v{ve} offset:8")
    a(f"""
    s_lshl_b32 s43, s36, 2
    s_add_u32 s43, s43, {WS_KS}
    v_mov_b32 v126, 0x7ffffff0
    v_cmp_eq_u32 vcc, 0, v{L}
    v_mov_b32 v127, s43
    s_nop 0
    v_cndmask_b32 v126, v126, v127, vcc
    buffer_store_dword v37, v126, s[44:47], 0 offen
    s_waitcnt lgkmcnt(0)
    v_cvt_pk_f16_f32 v120, v104, v104
    v_cvt_pk_f16_f32 v121, v105, v106
    buffer_store_dwordx2 v[120:121], v20, s[44:47], s42 offen
    v_cvt_pk_f16_f32 v124, v108, v108
    v_cvt_pk_f16_f32 v125, v108, v109
    v_cvt_pk_f16_f32 v126, v109, v109
    v_cvt_pk_f16_f32 v127, v110, v110
    buffer_store_dwordx4 v[124:127], v21, s[44:47], s42 offen
    v_cvt_pk_f16_f32 v128, v112, v112
    v_mov_b32 v129, v128
    v_cvt_pk_f16_f32 v130, v112, v113
    v_cvt_pk_f16_f32 v131, v113, v113
    buffer_store_dwordx4 v[128:131], v22, s[44:47], s42 offen
    v_mov_b32 v132, v131
    v_mov_b32 v133, v131
    v_cvt_pk_f16_f32 v134, v114, v114
    v_mov_b32 v135, v134
    buffer_store_dwordx4 v[132:135], v22, s[44:47], s42 offen offset:1024
    """)
    if stamp:
        a(f"""
        s_waitcnt vmcnt(0)
        s_memrealtime s[54:55]
        s_waitcnt lgkmcnt(0)
        v_mov_b32 v50, s54
        v_mov_b32 v51, s54
        s_lshl_b32 s20, s2, 3
        s_add_u32 s20, s20, {WS_DBG + 0x40000 + 2048}
        v_mov_b32 v52, s20
        buffer_store_dwordx2 v[50:51], v52, s[44:47], 0 offen
        """)
    a('L_kgen_done:\ns_endpgm')
```

```python
from asmlib import *
from layout import *

def srd(a, sbase, sptr, nbytes):
    a(f"""
    s_mov_b32 s{sbase}, s{sptr}
    s_mov_b32 s{sbase+1}, s{sptr+1}
    s_mov_b32 s{sbase+2}, {nbytes}
    s_mov_b32 s{sbase+3}, 0x20000
    """)

def red32(a, v, t):
    a(f"""
    s_nop 1
    v_add_f32_dpp v{v}, v{v}, v{v} quad_perm:[1,0,3,2] row_mask:0xf bank_mask:0xf
    s_nop 1
    v_add_f32_dpp v{v}, v{v}, v{v} quad_perm:[2,3,0,1] row_mask:0xf bank_mask:0xf
    s_nop 1
    v_add_f32_dpp v{v}, v{v}, v{v} row_half_mirror row_mask:0xf bank_mask:0xf
    s_nop 1
    v_add_f32_dpp v{v}, v{v}, v{v} row_mirror row_mask:0xf bank_mask:0xf
    s_nop 0
    v_mov_b32 v{t}, v{v}
    s_nop 1
    v_permlane16_swap_b32 v{v}, v{t}
    s_nop 1
    v_add_f32 v{v}, v{v}, v{t}
    """)

def rbf(a, dst, src, tmp=None):
    a(f"v_cvt_pk_bf16_f32 v{dst}, v{src}, v{src}")
    a(f"v_and_b32 v{dst}, 0xffff0000, v{dst}")

def layernorm(a, X, P, T):
    s, t, m, q, r = T, T+1, T+2, T+4, T+6
    a(f"v_pk_add_f32 v[{q}:{q+1}], v[{X}:{X+1}], v[{X+2}:{X+3}]")
    for i in range(2, 9):
        a(f"v_pk_add_f32 v[{q}:{q+1}], v[{q}:{q+1}], v[{X+2*i}:{X+2*i+1}]")
    a(f"v_add_f32 v{s}, v{q}, v{q+1}")
    red32(a, s, t)
    a(f"v_mul_f32 v{s}, 0x3ae38e39, v{s}")
    a(f"v_sub_f32 v{m}, 0, v{s}")
    a(f"v_mov_b32 v{m+1}, v{m}")
    a(f"v_pk_add_f32 v[{r}:{r+1}], v[{X}:{X+1}], v[{m}:{m+1}]")
    a(f"v_pk_mul_f32 v[{q}:{q+1}], v[{r}:{r+1}], v[{r}:{r+1}]")
    for i in range(1, 9):
        a(f"v_pk_add_f32 v[{r}:{r+1}], v[{X+2*i}:{X+2*i+1}], v[{m}:{m+1}]")
        a(f"v_pk_fma_f32 v[{q}:{q+1}], v[{r}:{r+1}], v[{r}:{r+1}], v[{q}:{q+1}]")
    a(f"v_add_f32 v{q}, v{q}, v{q+1}")
    red32(a, q, t)
    a(f"v_mul_f32 v{q}, 0x3ae38e39, v{q}")
    rbf(a, q, q)
    a(f"v_add_f32 v{q}, 0x3727c5ac, v{q}")
    rbf(a, q, q)
    a(f"v_sqrt_f32 v{q}, v{q}")
    a("s_nop 0")
    rbf(a, q, q)
    a(f"v_rcp_f32 v{r}, v{q}")
    rbf(a, s, s)
    a(f"v_sub_f32 v{m}, 0, v{s}")
    a(f"v_mov_b32 v{m+1}, v{m}")
    a(f"v_mov_b32 v{r+1}, v{r}")
    for i in range(9):
        x = X + 2*i
        a(f"v_pk_add_f32 v[{x}:{x+1}], v[{x}:{x+1}], v[{m}:{m+1}]")
        a(f"v_cvt_pk_bf16_f32 v{P+i}, v{x}, v{x+1}")
    for i in range(9):
        x = X + 2*i
        a(f"v_lshlrev_b32 v{x}, 16, v{P+i}")
        a(f"v_and_b32 v{x+1}, 0xffff0000, v{P+i}")
        a(f"v_pk_mul_f32 v[{x}:{x+1}], v[{x}:{x+1}], v[{r}:{r+1}]")
        a(f"v_cvt_pk_bf16_f32 v{P+i}, v{x}, v{x+1}")
    for i in range(9):
        x = X + 2*i
        a(f"v_lshlrev_b32 v{x}, 16, v{P+i}")
        a(f"v_and_b32 v{x+1}, 0xffff0000, v{P+i}")

LN_LDS = 8*1184 + 4*2304

def gen_ln(prefetch=False, kgen=True, codepf=None, stamp=False):
    a = Asm()
    if stamp: a('s_memrealtime s[44:45]')
    X, P, T = 10, 28, 38
    a(f"""
    s_cmp_ge_u32 s2, 256
    s_cbranch_scc1 L_ln_done
    v_lshrrev_b32 v1, 6, v0
    s_nop 0
    v_readfirstlane_b32 s3, v1
    s_nop 3
    s_cmp_ge_u32 s3, 4
    s_cbranch_scc1 L_kgen
    s_load_dwordx2 s[4:5], s[0:1], {KA['u']}
    s_load_dwordx2 s[6:7], s[0:1], {KA['ws']}
    v_and_b32 v1, 31, v0              ; hl
    v_lshrrev_b32 v2, 5, v0
    s_lshl_b32 s16, s2, 3
    v_add_u32 v3, s16, v2
    v_mul_u32_u24 v3, 1152, v3
    v_lshl_add_u32 v3, v1, 2, v3
    s_waitcnt lgkmcnt(0)
    """)
    srd(a, 8, 4, 2359296)
    srd(a, 12, 6, 268435456)
    for i in range(9):
        a(f"buffer_load_dword v{P+i}, v3, s[8:11], 0 offen offset:{128*i}")
    a(f"""
    s_lshr_b32 s16, s2, 4             ; tile
    s_mul_i32 s16, s16, {36*4*1024}
    s_bfe_u32 s17, s2, 0x20002        ; tb
    s_lshl_b32 s17, s17, 10
    s_add_u32 s16, s16, s17
    s_and_b32 s17, s2, 3
    s_lshl_b32 s17, s17, 7
    s_add_u32 s16, s16, s17
    s_add_u32 s16, s16, {WS_Y}
    v_lshrrev_b32 v4, 3, v1
    v_lshlrev_b32 v4, 12, v4
    v_bfe_u32 v5, v1, 2, 1
    v_lshl_add_u32 v4, v5, 9, v4
    v_lshl_add_u32 v4, v2, 4, v4
    v_and_b32 v5, 3, v1
    v_lshl_add_u32 v4, v5, 2, v4      ; + i*16384
    v_bfe_u32 v6, v0, 5, 1            ; h
    v_lshlrev_b32 v5, 5, v1
    v_lshl_add_u32 v5, v6, 4, v5
    s_lshl_b32 s17, s3, 2
    v_add_u32 v5, s17, v5             ; + i*1024
    s_mul_i32 s18, s2, 9216
    s_add_u32 s18, s18, {WS_XT}
    v_mov_b32 v8, 0x05040100
    v_mov_b32 v9, 0x07060302
    v_cmp_eq_u32 vcc, 1, v6
    s_nop 1
    v_cndmask_b32 v8, v8, v9, vcc
    """)
    for i in range(9):
        a(f"s_waitcnt vmcnt({8-i})")
        a(f"v_lshlrev_b32 v{X+2*i}, 16, v{P+i}")
        a(f"v_and_b32 v{X+2*i+1}, 0xffff0000, v{P+i}")
    layernorm(a, X, P, T)
    H = 46
    for i in range(9):
        a(f"v_cvt_pk_f16_f32 v{H+i}, v{X+2*i}, v{X+2*i+1}")
    for i in range(9): a(f"v_mov_b32 v{56+i}, v{H+i}")
    for i in range(9): a(f"v_permlane32_swap_b32 v{H+i}, v{56+i}")
    a("s_nop 0")
    for i in range(9): a(f"v_perm_b32 v{H+i}, v{56+i}, v{H+i}, v8")
    for i in range(9):
        a(f"buffer_store_dword v{H+i}, v5, s[12:15], s18 offen offset:{1024*i}" if i < 4 else
          f"s_add_u32 s19, s18, {1024*i}\n buffer_store_dword v{H+i}, v5, s[12:15], s19 offen")
    layernorm(a, X, P, T)
    for i in range(9):
        a(f"s_add_u32 s19, s16, {16384*i}")
        a(f"buffer_store_dword v{P+i}, v4, s[12:15], s19 offen")
    a(f"""
    s_cmp_lg_u32 s3, 0
    s_cbranch_scc1 L_ln_noflag
    v_mov_b32 v40, 0
    v_lshlrev_b32 v41, 2, v0
    s_lshl_b32 s20, s2, 8
    s_add_u32 s20, s20, {WS_FLG}
    buffer_store_dword v40, v41, s[12:15], s20 offen
    L_ln_noflag:
    """)
    if stamp:
        a(f"""
        s_waitcnt vmcnt(0)
        s_memrealtime s[46:47]
        s_waitcnt lgkmcnt(0)
        v_mov_b32 v50, s44
        v_mov_b32 v51, s46
        s_lshl_b32 s20, s2, 3
        s_add_u32 s20, s20, {WS_DBG + 0x40000}
        v_mov_b32 v52, s20
        buffer_store_dwordx2 v[50:51], v52, s[12:15], 0 offen
        """)
    a.label("L_ln_done")
    a("s_endpgm")
    from k_kgen2 import gen_kgen
    a.label("L_kgen")
    gen_kgen(a, stamp)
    return a.text()
```

```python
from asmlib import *
from layout import *
from sched import *
from k_ln import srd

RING = 98304; SLOT = 12288; MISC = 147456
ACC = [64, 96]; FR = 128; BIAS = 152; GT = 168; GO = 200
V_W1, V_W2, V_Y, V_Y0, V_Y1, V_H, V_HW, V_A1, V_A2, V_B, V_P = 32, 35, 38, 39, 40, 41, 42, 43, 44, 45, 46
V_GA = 56
V_A2B, V_A2C, V_A2D = 49, 50, 51
S_RB0 = 47
PD2 = 10
BATCH = False
START_ST = 2
RAMP = 1
def slot_of(n):
    if n < 43 or not DEEP: return 8 + n % 4
    return [0, 1, 2, 3, 4, 5, 6, 7, 11, 8, 9, 10][(n - 43) % 12]
DEEP = True
S_W1, S_W2, S_WS, S_B1, S_X, S_OUT, S_B2 = 8, 12, 16, 20, 24, 28, 32
S_WV, S_TH, S_CG, S_T, S_J = 36, 37, 38, 39, 40
S_W1B, S_W2B, S_RB, S_YG, S_YL, S_SO, S_GB, S_PB = 41, 42, 43, 44, 45, 62, 66, 49
GA = 0xc0135761
GB = 0xbdd2d0c8

def yreg(ks, tb):
    n = ks*2 + tb
    return ar(4*n, 4) if n < 64 else vr(224 + 4*(n-64), 4)
def hreg(k, tb):
    return ar(4*(k*2+tb), 4)

def gelu_plan(acc, Q):
    T = GT
    if PKMODE == 0:
        head = []
        c1 = [f"v_pk_mul_f32 v[{T+2*e}:{T+2*e+1}], v[{acc+2*e}:{acc+2*e+1}], v[{acc+2*e}:{acc+2*e+1}]" for e in range(16)]
    else:
        head = [V(f"v_mul_f32 v{T+e}, v{acc+e}, v{acc+e}") for e in range(32)]
        c1 = []
    c1 += [f"v_pk_fma_f32 v[{T+2*e}:{T+2*e+1}], v[{T+2*e}:{T+2*e+1}], s[{S_GB}:{S_GB+1}], v[{V_GA}:{V_GA+1}]" for e in range(16)]
    c1 += [f"v_pk_mul_f32 v[{T+2*e}:{T+2*e+1}], v[{T+2*e}:{T+2*e+1}], v[{acc+2*e}:{acc+2*e+1}]" for e in range(16)]
    mid = []
    G = 4
    ng = 32 // G
    for g in range(ng + 2):
        if g < ng: mid += [V(f"v_exp_f32 v{T+G*g+e}, v{T+G*g+e}") for e in range(G)]
        if 0 <= g - 1 < ng: mid += [V(f"v_add_f32 v{T+G*(g-1)+e}, 1.0, v{T+G*(g-1)+e}") for e in range(G)]
        if 0 <= g - 2 < ng: mid += [V(f"v_rcp_f32 v{T+G*(g-2)+e}, v{T+G*(g-2)+e}") for e in range(G)]
    tail = []
    for gi, (tb, u) in enumerate([(0,0),(0,1),(1,0),(1,1)]):
        x = T + 16*tb + 8*u; o = GO + 4*gi; xa = acc + 16*tb + 8*u
        tail += [V(f"v_mul_f32 v{x+e}, v{x+e}, v{xa+e}") for e in range(8)]
        tail += [V(f"v_cvt_pk_bf16_f32 v{o+e}, v{x+2*e}, v{x+2*e+1}") for e in range(4)]
        tail.append(DS(f"ds_write_b128 v{V_HW}, v[{o}:{o+3}] offset:{(8*Q + 2*u + tb)*1024}", ('HW', Q)))
    return head, c1, mid + tail if MERGE else mid, [] if MERGE else tail

def gelu_items(acc, Q):
    streams = [[], []]
    for gi, (tb, u) in enumerate([(0,0),(0,1),(1,0),(1,1)]):
        it = streams[gi % 2]
        x = acc + 16*tb + 8*u
        t = GT + 8*(gi % 2); o = GO + 4*(gi % 2)
        R = range(8)
        it += [V(f"v_mul_f32 v{t+e}, v{x+e}, v{x+e}") for e in R]
        it += [V(f"v_fma_f32 v{t+e}, v{t+e}, s{S_GB}, v{V_GA}") for e in R]
        it += [V(f"v_mul_f32 v{t+e}, v{t+e}, v{x+e}") for e in R]
        it += [V(f"v_exp_f32 v{t+e}, v{t+e}") for e in R]
        it += [V(f"v_add_f32 v{t+e}, 1.0, v{t+e}") for e in R]
        it += [V(f"v_rcp_f32 v{t+e}, v{t+e}") for e in R]
        it += [V(f"v_mul_f32 v{t+e}, v{t+e}, v{x+e}") for e in R]
        it += [V(f"v_cvt_pk_bf16_f32 v{o+e//2}, v{t+e}, v{t+e+1}") for e in range(0, 8, 2)]
        it.append(DS(f"ds_write_b128 v{V_HW}, v[{o}:{o+3}] offset:{(8*Q + 2*u + tb)*1024}", ('HW', Q)))
    return streams

def partial_items(acc, q_soff_expr, tag):
    it = []
    if 'nostore' in OPT: return it
    for k in range(4):
        o = GO + 4*(k % 2)
        x = acc + 8*k
        it += [V(f"v_cvt_pk_bf16_f32 v{o+e}, v{x+2*e}, v{x+2*e+1}") for e in range(4)]
        if k == 0: it.append(V(q_soff_expr))
        it.append(VM(f"buffer_store_dwordx4 v[{o}:{o+3}], v{V_P}, s[{S_WS}:{S_WS+3}], s{S_SO+2} offen offset:{1024*k}{PFLAG}", tag))
    return it

def mlp_setup(a):
    a(f"""
    s_and_b32 s3, s2, 7               ; xcd
    s_lshr_b32 s4, s2, 3              ; k 0..23
    s_mul_i32 s5, s4, 171
    s_lshr_b32 s5, s5, 9              ; k/3
    s_mul_i32 s6, s5, 3
    s_sub_u32 s6, s4, s6              ; k%3
    s_lshr_b32 s7, s3, 1
    s_mul_i32 s7, s7, 3
    s_add_u32 s{S_J}, s7, s6          ; slice j
    s_and_b32 s7, s3, 1
    s_lshl_b32 s7, s7, 3
    s_add_u32 s{S_T}, s7, s5          ; tile t
    s_mul_i32 s{S_YL}, s{S_WV}, 6144
    s_mul_i32 s3, s{S_T}, 147456
    s_add_u32 s3, s3, s{S_YL}
    s_add_u32 s{S_YG}, s3, {WS_Y}
    v_lshlrev_b32 v{V_Y}, 4, v60
    s_mul_i32 s3, s{S_WV}, {24*9216}
    s_mul_i32 s4, s{S_J}, 768
    s_add_u32 s{S_W1B}, s3, s4
    s_mul_i32 s{S_RB0}, s{S_WV}, 3072
    v_lshrrev_b32 v2, 3, v60          ; r = lane>>3
    v_and_b32 v3, 7, v60              ; p
    v_lshrrev_b32 v4, 1, v3
    v_and_b32 v5, 2, v2
    v_xor_b32 v4, v4, v5
    v_lshlrev_b32 v4, 1, v4
    v_and_b32 v3, 1, v3
    v_or_b32 v4, v4, v3
    v_lshlrev_b32 v7, 4, v4
    v_mul_u32_u24 v5, 9216, v2
    v_mov_b32 v6, v2
    v_add_u32 v{V_W1}, v5, v7
    v_add_u32 v{V_W1+1}, {8*9216-1024}, v{V_W1}
    v_add_u32 v{V_W1+2}, {2*(8*9216-1024)}, v{V_W1}
    s_mul_i32 s3, s{S_J}, 768
    v_min_u32 v2, 95, v0
    v_lshlrev_b32 v2, 3, v2
    v_add_u32 v8, s3, v2
    """)

def mlp_setup2(a):
    a(f"""
    s_lshr_b32 s{S_TH}, s{S_WV}, 1
    s_and_b32 s{S_CG}, s{S_WV}, 1
    s_mul_i32 s3, s{S_J}, 384
    s_mul_i32 s4, s{S_WV}, 24
    s_add_u32 s3, s3, s4
    s_mul_i32 s{S_W2B}, s3, 1152
    s_add_u32 s{S_RB}, s{S_RB0}, {RING}
    s_mul_i32 s3, s{S_T}, 108
    s_add_u32 s3, s3, s{S_J}
    s_lshl_b32 s3, s3, 14
    s_lshl_b32 s4, s{S_WV}, 12
    s_add_u32 s3, s3, s4
    s_add_u32 s{S_PB}, s3, {WS_P}
    s_mov_b32 s{S_GB}, {hex(GB)}
    s_mov_b32 s{S_GB+1}, {hex(GB)}
    v_mov_b32 v{V_GA}, {hex(GA)}
    v_mov_b32 v{V_GA+1}, {hex(GA)}
    v_mul_u32_u24 v5, 1152, v6
    v_add_u32 v{V_W2}, v5, v7
    v_add_u32 v{V_W2+1}, {8*1152-1024}, v{V_W2}
    v_add_u32 v{V_W2+2}, {2*(8*1152-1024)}, v{V_W2}
    v_mov_b32 v{V_P}, v{V_Y}
    s_lshl_b32 s3, s{S_TH}, 11
    v_add_u32 v{V_Y0}, s3, v{V_Y}
    v_add_u32 v{V_Y1}, 49152, v{V_Y0}
    s_mul_i32 s3, s{S_TH}, 49152
    v_add_u32 v{V_H}, s3, v{V_Y}
    s_lshl_b32 s3, s{S_CG}, 12
    v_add_u32 v{V_HW}, s3, v{V_H}
    v_and_b32 v2, 3, v60
    v_bfe_u32 v3, v60, 2, 2
    v_bfe_u32 v4, v60, 4, 1
    v_lshrrev_b32 v5, 5, v60
    s_lshl_b32 s3, s{S_CG}, 1
    v_add_u32 v4, s3, v4
    v_and_b32 v6, 2, v3
    v_xor_b32 v4, v4, v6
    v_lshlrev_b32 v4, 5, v4           ; slot*32
    v_lshl_add_u32 v4, v2, 3, v4      ; + c'*8
    v_lshl_add_u32 v4, v3, 7, v4      ; + r'*128
    v_add_u32 v4, {RING}, v4
    v_lshl_add_u32 v{V_A1}, v5, 10, v4
    v_lshl_add_u32 v{V_A2}, v5, 9, v4
    v_subrev_u32 v{V_A2B}, {RING}, v{V_A2}
    v_add_u32 v{V_A2C}, 61440, v{V_A2B}
    v_add_u32 v{V_A2D}, 122880, v{V_A2B}
    s_lshl_b32 s3, s{S_CG}, 7
    s_add_u32 s3, s3, {MISC}
    v_lshlrev_b32 v{V_B}, 4, v5
    v_add_u32 v{V_B}, s3, v{V_B}
    s_mul_i32 s3, s{S_T}, 12
    s_add_u32 s3, s3, s{S_J}
    s_lshl_b32 s3, s3, 2
    s_add_u32 s3, s3, s{S_WV}          ; (t*12 + j)*4 + w
    s_lshl_b32 s3, s3, 6
    s_add_u32 s3, s3, {F_MLP if ONE else WS_FLG}
    v_mov_b32 v2, s3
    v_mov_b32 v{V_FL}, 0x7ffffff0
    v_cmp_eq_u32 vcc, 0, v60
    s_nop 1
    v_cndmask_b32 v{V_FL}, v{V_FL}, v2, vcc
    """)

STAMP = False
OPT = set()
TAILISSUE = None
ONE = False
LATE_HOOK = None
PROLOGUE = None
PRE_Y = None
TFINE0 = False
TAILPRE = None
PK = True
C2AT = 27
PKMODE = 1
SPREAD1 = True
PREBAR = 8
HEADN = 4
MERGE = True
FLAGD = 8
STPACE = 4
INK = False
PFLAG = ''
V_FL, V_FV = 47, 48
DPOS = (1, 3, 5)
DCOST = 16
GAPB = 28
PFINE = False
FINE = None
def fstamp(a, k):
    if k < 16: a(f"s_memtime s[{70+2*k}:{71+2*k}]")
def fstamp_out(a):
    a("s_waitcnt lgkmcnt(0)")
    for k in range(16): a(f"v_mov_b32 v{2+k}, s{min(101, 70+2*k)}")
    a(f"""
    s_lshl_b32 s3, s2, 2
    s_add_u32 s3, s3, s{S_WV}
    s_lshl_b32 s3, s3, 6
    s_add_u32 s3, s3, {WS_DBG}
    v_mov_b32 v1, s3
    """)
    for k in range(0, 16, 4):
        a(f"buffer_store_dwordx4 v[{2+k}:{5+k}], v1, s[{S_WS}:{S_WS+3}], 0 offen offset:{4*k}")
    a("s_waitcnt vmcnt(0)")
def stamp(a, k):
    if STAMP:
        b = 70 + 4*k if k < 5 else 4
        a(f"s_memtime s[{b}:{b+1}]\n s_memrealtime s[{b+2}:{b+3}]")
def stamp_out(a, nk):
    if not STAMP: return
    a("s_waitcnt lgkmcnt(0)")
    for k in range(nk):
        b = 70 + 4*k if k < 5 else 4
        a(f"v_mov_b32 v{2+2*k}, s{b}\n v_mov_b32 v{3+2*k}, s{b+2}")
    a(f"""
    s_lshl_b32 s3, s2, 2
    s_add_u32 s3, s3, s{S_WV}
    s_lshl_b32 s3, s3, 6
    s_add_u32 s3, s3, {WS_DBG}
    v_mov_b32 v1, s3
    """)
    for k in range(0, nk, 2):
        a(f"buffer_store_dwordx4 v[{2+2*k}:{5+2*k}], v1, s[{S_WS}:{S_WS+3}], 0 offen offset:{8*k}")
    a("s_waitcnt vmcnt(0)")

ILV = False
def p2_order():
    o = [(sg, s_) for sg in range(9) for s_ in range(4)]
    if ILV: o = [(0,0),(0,1),(0,2),(1,0),(1,1),(1,2),(0,3),(1,3)] + o[8:]
    return o
def accp(sg):
    if not ILV: return ACC[sg % 2]
    return ACC[0] if sg == 0 else (224 if sg == 1 else ACC[(sg + 1) % 2])

def gen_mlp_main(a, qorder_static=True):
    st = Stream(a)
    NST = 72
    P2ST = p2_order()
    PD = 2 if 'pd2' in OPT else 3
    def w_dma(n):
        slot = slot_of(n)
        if n < 36:
            Q, s_ = divmod(n, 6)
            so = f"s_add_u32 s{S_SO}, s{S_W1B}, {s_*96*9216 + 128*Q}"; v = V_W1; srd_ = S_W1
            if 'w2pat' in OPT:
                so = f"s_add_u32 s{S_SO}, s{S_W2B}, {s_*96*1152 + 128*Q}"; v = V_W2; srd_ = S_W2
            if 'lin' in OPT:
                so = f"s_add_u32 s{S_SO}, s{S_W2B}, {(s_*6+Q)*12288}"; v = V_Y; srd_ = S_W2
        else:
            sg, s_ = P2ST[n - 36]
            so = f"s_add_u32 s{S_SO}, s{S_W2B}, {s_*96*1152 + 128*sg}"; v = V_W2; srd_ = S_W2
        if 'nodma' in OPT and n >= 6: return []
        it = [V(f"s_add_u32 m0, s{S_RB0}, {slot*SLOT}"), V(so)]
        if 'nom0' in OPT and n >= 6: it = [V(so)]
        if 'onlym0' in OPT and n >= 6: return it
        for jj in range(3):
            it.append(VM(f"buffer_load_dwordx4 v{v+jj}, s[{srd_}:{srd_+3}], s{S_SO} offen" + (f" offset:{1024*jj}" if jj else "") + " lds", ('W', n)))
        return it
    def y_dma(s_):
        it = []
        for half, (j0, j1) in enumerate([(0, 4), (4, 6)]):
            it.append(V(f"s_add_u32 m0, s{S_YL}, {(s_ % 4)*24576 + j0*1024}"))
            it.append(V(f"s_add_u32 s{S_SO+1}, s{S_YG}, {s_*24576 + j0*1024}"))
            for jj in range(j0, j1):
                o = (jj - j0)*1024
                it.append(VM(f"buffer_load_dwordx4 v{V_Y}, s[{S_WS}:{S_WS+3}], s{S_SO+1} offen" + (f" offset:{o}" if o else "") + (" sc1" if ONE else "") + " lds", ('Y', s_)))
        return it
    def a_reads(i):
        n, ksl = divmod(i, 6); slot = slot_of(n); fr = FR + 4*(i % 4)
        if i < 216: v, o2, off = V_A1, 512, (slot - 8)*SLOT + ksl*2048
        else:
            o2 = 1024
            v, base = (V_A2B, 0) if slot < 5 else ((V_A2C, 5) if slot < 10 else (V_A2D, 10))
            off = (slot - base)*SLOT + ksl*2048
        return [DS(f"ds_read_b64_tr_b16 v[{fr}:{fr+1}], v{v} offset:{off}", ('A', i)),
                DS(f"ds_read_b64_tr_b16 v[{fr+2}:{fr+3}], v{v} offset:{off+o2}", ('A', i))]
    def b_reads(i):
        if i < 36:
            s_, ksl = divmod(i, 6); slot = s_ % 4
            v = V_Y0 if slot < 2 else V_Y1
            return [DS(f"ds_read_b128 {yreg(i, tb)}, v{v} offset:{(slot % 2)*24576 + ksl*4096 + tb*1024}", ('A', i)) for tb in range(2)]
        if i >= 216 and P2ST[(i - 216)//6][0] == 0:
            k = 6*P2ST[(i - 216)//6][1] + (i - 216) % 6
            Q = k // 4
            assert ('HW', Q) in st.visible, f"H of quad {Q} not visible at step {i}"
            return [DS(f"ds_read_b128 {hreg(k, tb)}, v{V_H} offset:{(2*k+tb)*1024}", ('A', i)) for tb in range(2)]
        return []
    def bias_reads(Q):
        return [DS(f"ds_read_b128 v[{BIAS+4*r}:{BIAS+4*r+3}], v{V_B} offset:{Q*256 + r*32}", ('B', Q)) for r in range(4)]

    if PFINE: fstamp(a, 2)
    if PROLOGUE is None: st.put(VM(f"buffer_load_dwordx2 v[10:11], v8, s[{S_B1}:{S_B1+3}], 0 offen", 'b1'))
    def bias_to_lds():
        st.wait_vm('b1')
        a("""
        v_lshlrev_b32 v12, 16, v10
        v_and_b32 v13, 0xffff0000, v10
        v_lshlrev_b32 v14, 16, v11
        v_and_b32 v15, 0xffff0000, v11
        """)
        a(f"v_min_u32 v3, 95, v0\n v_lshlrev_b32 v3, 4, v3\n v_add_u32 v3, {MISC}, v3")
        st.put(DS("ds_write_b128 v3, v[12:15]", 'b1w'))
    if PROLOGUE is not None:
        st.vm = []
        PROLOGUE(a, st, y_dma, w_dma)
    elif PRE_Y is None:
        for s_ in range(3):
            for it in y_dma(s_): st.put(it)
            if s_ < PD:
                for it in w_dma(s_): st.put(it)
        if PFINE: fstamp(a, 3)
        mlp_setup2(a)
        if PFINE: fstamp(a, 4)
        bias_to_lds()
    else:
        for s_ in range(PD):
            for it in w_dma(s_): st.put(it)
        bias_to_lds()
        PRE_Y(a, st)
        st.vm = []; st.lg = []
        mlp_setup(a)
        for s_ in range(3):
            for it in y_dma(s_): st.put(it)
        mlp_setup2(a)
    if PFINE: fstamp(a, 5)
    st.wait_vm([('Y', 0), ('W', 0)])
    st.drain_lg()
    if PFINE: fstamp(a, 6)
    st.barrier()
    if 'ofine' in OPT: a('s_memrealtime s[88:89]')
    if PFINE: fstamp(a, 7)
    stamp(a, 1)
    for it in bias_reads(0): st.put(it)
    for i in (0, 1):
        for it in b_reads(i) + a_reads(i): st.put(it)
    bg = BG()
    post = []; plan = None
    nxt_stage = [43]
    mand_dma = []
    for it in y_dma(3) + w_dma(PD): mand_dma.append(it)
    NSTEP = 432
    for i in range(NSTEP):
        if (i + 2) % 6 == 0 and (i + 2) // 6 < NST:
            n = (i + 2) // 6
            for it in mand_dma: st.put(it)
            mand_dma = []
            NH5 = 42 if ILV else 39
            if n == NH5: bg.flush(st)
            st.wait_lg([('A', i + 1), ('HW', 5)] if n == NH5 else ('A', i + 1))
            pub = None
            if INK and n >= 36 + FLAGD and (n - 36 - FLAGD) % 4 == 0 and (n - 36 - FLAGD) // 4 < 8:
                pub = (n - 36 - FLAGD) // 4
                if ILV and pub == 0: pub = None
            if INK and ILV and n == 49: pub = 0
            if INK and ILV: assert FLAGD >= 10 and FLAGD != 13
            if pub is not None:
                assert not any(x.tag == ('P', pub) for q_ in bg.qs for x in q_), 'stores not yet issued'
                st.wait_vm(('P', pub))
            if 'novm' not in OPT or n < 6: st.wait_vm([('W', n), ('Y', n)])
            else: st.vm = st.vm[-30:]
            if 'nobar' not in OPT: st.barrier()
            else: st.visible |= st.done_lg
            if n == 1 and LATE_HOOK:
                LATE_HOOK(a); st.vm.append('flagK')
            if pub is not None:
                if ONE:
                    st.put(V(f"s_add_u32 s4, s{S_NONCE}, {pub + 1}")); st.put(V(f"v_mov_b32 v{V_FV}, s4"))
                else: st.put(V(f"v_mov_b32 v{V_FV}, {pub + 1}"))
                st.put(VM(f"buffer_store_dword v{V_FV}, v{V_FL}, s[{S_WS}:{S_WS+3}], 0 offen sc1", ('F', pub)))
            if n < 40 or not DEEP:
                if n + PD < NST: mand_dma = w_dma(n + PD)
            elif BATCH:
                sg_ = (n - 36) // 4; pos_ = (n - 36) % 4
                last_needed = min(NST - 1, 36 + 4*(sg_ + 2) - 1)
                todo = list(range(nxt_stage[0], last_needed + 1))
                k_ = (len(todo) + 1)//2 if pos_ == 0 else (len(todo) if pos_ == 1 else 0)
                mand_dma = []
                for m_ in todo[:k_]:
                    mand_dma += w_dma(m_); nxt_stage[0] = m_ + 1
            else:
                mand_dma = []
                for _ in range(2 if (n - 40) % RAMP == 0 else 1):
                    if nxt_stage[0] < NST and nxt_stage[0] - n <= PD2:
                        mand_dma += w_dma(nxt_stage[0]); nxt_stage[0] += 1
            if n + 3 <= 5: mand_dma = y_dma(n + 3) + mand_dma
        ph1 = i < 216
        if PFINE and i in (4, 10, 16, 22, 28, 34, 40, 46): fstamp(a, 8 + (i - 4)//6)
        if FINE and i >= FINE[0] and (i - FINE[0]) % FINE[1] == 0: fstamp(a, (i - FINE[0]) // FINE[1])
        if i == 36: stamp(a, 2)
        if i == 216: stamp(a, 3)
        if ph1: Q, ks = divmod(i, 36); acc = ACC[Q % 2]
        else:
            sg, s2_ = P2ST[(i - 216)//6]; ks = 6*s2_ + (i - 216) % 6; acc = accp(sg); u_ = i - 216
        if ks == 0 and not (ILV and not ph1 and sg in (1, 2)):
            for x in post: a(x)
            post = []
            bg.flush(st)
        gq = None
        if ph1 and Q > 0: gq = (ACC[(Q-1) % 2], Q-1, 1, C2AT, 34)
        if not ph1 and not ILV and sg == 0: gq = (ACC[1], 5, 1, 10, 15)
        if not ph1 and ILV and u_ < 36: gq = (ACC[1], 5, 1, 10, 33)
        if 'nogelu' in OPT: gq = None if ph1 else gq
        if gq and PK:
            ga, gQ, k1, k2, kend = gq
            ks_save = ks
            if not ph1 and ILV: ks = u_
            kc = k1 + (HEADN if PKMODE else 0)
            if ks == k1:
                plan = gelu_plan(ga, gQ)
                if plan[0]: bg.add([plan[0]], 2*(kc - k1))
            if ks == kc:
                bg.flush(st)
                post = plan[1]
            if ks == kc + 1:
                bg.add([plan[2]], 2*(kend - kc - 1))
            ks = ks_save
        elif gq:
            if ks == (1 if ph1 else 2): bg.add(gelu_items(gq[0], gq[1]), 2*34 if ph1 else 2*13)
        if ph1 and 20 <= ks < 24 and Q < 5: pre_bias = [bias_reads(Q + 1)[ks - 20]]
        else: pre_bias = []
        if not ph1 and ILV and u_ == 44:
            bg.add([partial_items(accp(0), f"s_add_u32 s{S_SO+2}, s{S_PB}, 0", ('P', 0))], 2*5)
        if not ph1 and ks == START_ST and sg > (1 if ILV else 0):
            q = sg - 1
            if ILV and sg == 2: bg.flush(st)
            bg.add([partial_items(accp(sg-1), f"s_add_u32 s{S_SO+2}, s{S_PB}, {q*12*16384}", ('P', q))], 2*STPACE)
        st.wait_lg(('A', i))
        first = ks == 0
        if ph1 and first: st.wait_lg(('B', Q))
        fr = FR + 4*(i % 4)
        nxt = []
        tgt = [i + 2]
        if (i + 4) % 6 == 0: tgt = [i + 2, i + 3]
        if (i + 3) % 6 == 0: tgt = []
        for x in tgt:
            if x < NSTEP: nxt += a_reads(x) + b_reads(x)
        for tb in range(2):
            c = vr(acc + 16*tb, 16)
            b = yreg(ks, tb) if ph1 else hreg(ks, tb)
            src = (vr(BIAS, 16) if ph1 else '0') if first else c
            a(f"v_mfma_f32_32x32x16_bf16 {c}, {vr(fr, 4)}, {b}, {src}")
            used = 0
            if tb == 0:
                for it in nxt: st.put(it); used += it.cost
                for it in pre_bias: st.put(it); used += it.cost
            else:
                pos = (i + 2) % 6
                nv = sum(1 for x in mand_dma if x.kind == 'vm')
                if nv > 3 or not (('spread' in OPT) or (ph1 and SPREAD1)):
                    k = -(-nv // (6 - pos))
                else:
                    k = 1 if pos in DPOS else 0
                    if pos == 5: k = nv
                while mand_dma and k > 0:
                    it = mand_dma.pop(0); st.put(it); used += it.cost if it.kind != 'vm' else DCOST
                    if it.kind == 'vm': k -= 1
            gb_ = GAPB
            if tb == 1 and (i + 3) % 6 == 0: gb_ = min(gb_, PREBAR)
            if not (post and tb == 1): bg.fill(st, gb_ - used)
        for x in post: a(x)
        post = []
    for it in mand_dma: st.put(it)
    stamp(a, 4)
    if TFINE0: a('s_memrealtime s[70:71]')
    if TAILISSUE: TAILISSUE(a)
    a("s_nop 7\ns_nop 3")
    bg.flush(st)
    for it in partial_items(accp(8), f"s_add_u32 s{S_SO+2}, s{S_PB}, {8*12*16384}", ('P', 8)): st.put(it)
    nyoung = TAILPRE(a) if TAILPRE else 0
    a(f's_waitcnt vmcnt({nyoung})'); st.vm = []
    if INK:
        a((f"s_add_u32 s4, s{S_NONCE}, 9\n v_mov_b32 v{V_FV}, s4" if ONE else f"v_mov_b32 v{V_FV}, 9") + f"\n buffer_store_dword v{V_FV}, v{V_FL}, s[{S_WS}:{S_WS+3}], 0 offen sc1")
    if FINE or PFINE: fstamp_out(a)

def gen_common_head(a):
    a(f"""
    s_cmp_ge_u32 s2, 256
    s_cbranch_scc1 L_main_done
    s_load_dwordx2 s[4:5], s[0:1], {KA['w1']}
    s_load_dwordx2 s[6:7], s[0:1], {KA['w2']}
    s_load_dwordx2 s[52:53], s[0:1], {KA['ws']}
    s_load_dwordx2 s[54:55], s[0:1], {KA['b1']}
    s_load_dwordx2 s[56:57], s[0:1], {KA['u']}
    s_load_dwordx2 s[58:59], s[0:1], {KA['out']}
    s_load_dwordx2 s[60:61], s[0:1], {KA['b2']}
    v_lshrrev_b32 v61, 6, v0
    v_and_b32 v60, 63, v0
    s_nop 0
    v_readfirstlane_b32 s{S_WV}, v61
    s_waitcnt lgkmcnt(0)
    """)
    if PFINE: fstamp(a, 1)
    srd(a, S_W1, 4, 5308416); srd(a, S_W2, 6, 5308416); srd(a, S_WS, 52, 268435456)
    srd(a, S_B1, 54, 9216); srd(a, S_X, 56, 2359296); srd(a, S_OUT, 58, 2359296); srd(a, S_B2, 60, 1152)

if __name__ == '__main__':
    from k_ln import gen_ln, LN_LDS
    import sys
    STAMP = len(sys.argv) > 1 and sys.argv[1] == 'stamp'
    if len(sys.argv) > 1 and sys.argv[1].startswith('fine'):
        FINE = tuple(int(x) for x in sys.argv[1][4:].split(','))
    OPT = set(sys.argv[2:]) if len(sys.argv) > 2 else set()
    for o in OPT:
        if o.startswith('dc'): DCOST = int(o[2:])
        if o.startswith('gb'): GAPB = int(o[2:])
    a = Asm()
    stamp(a, 0)
    gen_common_head(a)
    a("s_cmp_ge_u32 s2, 192\ns_cbranch_scc1 L_main_done")
    mlp_setup(a)
    gen_mlp_main(a)
    a("L_main_done:\ns_endpgm")
    body = a.text()
    if 'e64' in OPT or 'al8' in OPT:
        import re
        out = []
        for l in body.split('\n'):
            t = l.strip()
            if re.match(r'v_(mul_f32|exp_f32|add_f32|rcp_f32) ', t) and 'x' not in t.split(',')[1]:
                op, rest = t.split(' ', 1)
                l = '    ' + op + '_e64 ' + rest
            out.append(l)
        body = '\n'.join(out)
    if 'al8' in OPT:
        out = []; lines = body.split('\n'); i = 0
        def is4(t):
            t = t.strip()
            if t.startswith(('s_waitcnt','s_barrier','s_nop')): return True
            if t.startswith('s_add_u32'):
                last = t.split(',')[-1].strip()
                try:
                    v = int(last, 0); return -16 <= v <= 64
                except: return True
            return False
        started = False; odd = False
        for l in lines:
            t = l.strip()
            if t.startswith('v_mfma') and not started:
                started = True
            if started and t and not t.endswith(':') and not t.startswith(';'):
                if is4(t): odd = not odd
                elif t.startswith(('v_mfma','ds_','buffer_','v_')) or t.startswith('s_add_u32'):
                    if odd:
                        out.append('    s_nop 0'); odd = False
            out.append(l)
        body = '\n'.join(out)
    class _T:
        def text(self): return body
    a = _T()
    txt = build_file([('ln_kernel', (256,1,1), (256,1,1), LN_LDS), ('main_kernel', (256,1,1), (256,1,1), 163840)],
                     [('ln_kernel', gen_ln(), 64, 40, 64), ('main_kernel', a.text(), 512, 102, 256)])
    open(('mlp1s' + ''.join('_'+o for o in sorted(OPT)) + '.s') if STAMP else (('mlp1f' + ''.join('_'+o for o in sorted(OPT)) + '.s') if FINE else 'mlp1.s'), 'w').write(txt)
```

```python
import re
from asmlib import *
from layout import *
from k_ln import layernorm
import k_kgen, k_red
S_WS, S_WV, S_X = 16, 36, 24
OFINE = False
def OT(a, k):
    if OFINE: a(f"s_memrealtime s[{70+2*k}:{71+2*k}]")
LN_PITCH = 1184
TLBW = True
def TOUCH():
    if not TLBW: return ''
    pages = [WS_Y, WS_Y + 0x200000, WS_XT + 0x100000, WS_XT + 0x200000, WS_K, WS_K + 0x200000, WS_KS]
    t = ''
    for i, p in enumerate(pages):
        t += f"v_mov_b32 v58, {p}\n    v_cmp_eq_u32 vcc, {i+1}, v60x\n    s_nop 1\n    v_cndmask_b32 v56, v56, v58, vcc\n    "
    return t
LN_T = 8*LN_PITCH
LN_NON = LN_T + 4*2304
def shift_v(text, off):
    def f(m):
        n = int(m.group(1)); return f"v{n+off}" if n else "v0"
    def g(m): return f"v[{int(m.group(1))+off}:{int(m.group(2))+off}]"
    text = re.sub(r'\bv\[(\d+):(\d+)\]', g, text)
    return re.sub(r'\bv(\d+)\b', f, text)

def ln_part(a, lds=0, tag='m', between=None, nyoung=0):
    b = Asm()
    X, P, T = 10, 28, 38
    b(f"""
    v_and_b32 v1, 31, v0              ; hl
    v_lshrrev_b32 v2, 5, v0
    s_lshl_b32 s54, s2, 3
    v_add_u32 v3, s54, v2
    v_mul_u32_u24 v3, 1152, v3
    v_lshl_add_u32 v3, v1, 2, v3
    """)
    for i in range(9):
        b(f"buffer_load_dword v{P+i}, v3, s[{S_X}:{S_X+3}], 0 offen offset:{128*i}")
    b(f"""
    v_mov_b32 v56, {WS_NONCE}
    {TOUCH()}
    buffer_load_dword v57, v56, s[{S_WS}:{S_WS+3}], 0 offen sc1
    @@BETWEEN@@
    v_mul_u32_u24 v4, {LN_PITCH}, v2
    v_lshl_add_u32 v4, v1, 2, v4
    v_add_u32 v4, {lds}, v4
    v_lshrrev_b32 v5, 6, v0           ; wave
    v_mul_u32_u24 v5, 2304, v5
    v_bfe_u32 v6, v0, 5, 1            ; h
    v_lshlrev_b32 v7, 3, v1
    v_lshl_add_u32 v7, v6, 2, v7      ; (2*hl+h)*4
    v_add_u32 v5, v5, v7
    v_add_u32 v5, {lds + LN_T}, v5
    v_mov_b32 v8, 0x05040100
    v_mov_b32 v9, 0x07060302
    v_cmp_eq_u32 vcc, 1, v6
    s_nop 1
    v_cndmask_b32 v8, v8, v9, vcc
    s_waitcnt vmcnt({nyoung})
    v_add_u32 v57, 16, v57
    v_and_b32 v57, 0xfffffff0, v57
    v_or_b32 v57, 0x80000000, v57
    s_nop 0
    v_readfirstlane_b32 s{S_NONCE}, v57
    """)
    for i in range(9):
        b(f"v_lshlrev_b32 v{X+2*i}, 16, v{P+i}")
        b(f"v_and_b32 v{X+2*i+1}, 0xffff0000, v{P+i}")
    OT(b, 2)
    layernorm(b, X, P, T)
    H = 46
    for i in range(9): b(f"v_cvt_pk_f16_f32 v{H+i}, v{X+2*i}, v{X+2*i+1}")
    for i in range(9): b(f"v_mov_b32 v{60+i}, v{H+i}")
    for i in range(9): b(f"v_permlane32_swap_b32 v{H+i}, v{60+i}")
    b("s_nop 0")
    for i in range(9): b(f"v_perm_b32 v{H+i}, v{60+i}, v{H+i}, v8")
    for i in range(9): b(f"ds_write_b32 v5, v{H+i} offset:{256*i}")
    layernorm(b, X, P, T)
    for i in range(9): b(f"ds_write_b32 v4, v{P+i} offset:{128*i}")
    OT(b, 3)
    b(f"""
    v_and_b32 v1, 7, v0               ; tokl
    v_bfe_u32 v2, v0, 3, 1            ; hh
    v_lshrrev_b32 v3, 4, v0
    v_mul_u32_u24 v4, {LN_PITCH}, v1
    v_lshl_add_u32 v4, v2, 4, v4
    v_lshl_add_u32 v4, v3, 5, v4
    v_add_u32 v4, {lds}, v4
    s_lshr_b32 s56, s2, 4             ; tile
    s_mul_i32 s56, s56, {36*4*1024}
    s_bfe_u32 s57, s2, 0x20002        ; tb = (b>>2)&3
    s_lshl_b32 s57, s57, 10
    s_add_u32 s56, s56, s57
    s_and_b32 s57, s2, 3
    s_lshl_b32 s57, s57, 7
    s_add_u32 s56, s56, s57
    s_add_u32 s56, s56, {WS_Y}
    v_lshlrev_b32 v5, 12, v3          ; ks*4096
    v_lshl_add_u32 v5, v2, 9, v5
    v_lshl_add_u32 v5, v1, 4, v5
    v_lshlrev_b32 v6, 2, v0
    v_add_u32 v6, {lds + LN_T}, v6
    v_lshlrev_b32 v7, 4, v0
    s_mul_i32 s58, s2, 9216
    s_add_u32 s58, s58, {WS_XT}
    s_waitcnt lgkmcnt(0)
    s_barrier
    s_waitcnt vmcnt(0)
    """)
    for rho in range(2):
        c = 12 + rho*8
        b(f"ds_read_b128 v[{c}:{c+3}], v4 offset:{512*rho}")
        for w in range(4): b(f"ds_read_b32 v{c+4+w}, v6 offset:{1024*rho + 2304*w}")
    b(f"s_cmp_lg_u32 s{S_WV}, 0\n s_cbranch_scc1 L_ln_skip_{tag}")
    b("ds_read_b128 v[28:31], v4 offset:1024")
    for w in range(4): b(f"ds_read_b32 v{32+w}, v6 offset:{2048 + 2304*w}")
    b("s_waitcnt lgkmcnt(0)")
    b(f"s_add_u32 s59, s56, {32*4096}")
    b(f"buffer_store_dwordx4 v[28:31], v5, s[{S_WS}:{S_WS+3}], s59 offen sc1")
    b("s_add_u32 s59, s58, 8192")
    b(f"buffer_store_dwordx4 v[32:35], v7, s[{S_WS}:{S_WS+3}], s59 offen sc1")
    b(f"L_ln_skip_{tag}:")
    b("s_waitcnt lgkmcnt(0)")
    for rho in range(2):
        c = 12 + rho*8
        b(f"s_add_u32 s59, s56, {rho*16*4096}")
        b(f"buffer_store_dwordx4 v[{c}:{c+3}], v5, s[{S_WS}:{S_WS+3}], s59 offen sc1")
        b(f"s_add_u32 s59, s58, {rho*4096}")
        b(f"buffer_store_dwordx4 v[{c+4}:{c+7}], v7, s[{S_WS}:{S_WS+3}], s59 offen sc1")
    t = shift_v(b.text(), 64).replace('v60x', 'v60')
    smap = {54: 91, 55: 92, 56: 94, 57: 95, 58: 96, 59: 97}
    t = re.sub(r'\bs\[56:57\]', 's[94:95]', t)
    t = re.sub(r'\bs(5[4-9])\b', lambda m: f"s{smap[int(m.group(1))]}", t)
    pre, post = t.split('@@BETWEEN@@')
    a(pre)
    if between: between(a)
    a(post)

def publish_ln(a):
    a(f"""
    s_waitcnt vmcnt(0)
    s_barrier
    s_lshl_b32 s4, s2, 6
    s_add_u32 s4, s4, {F_LN}
    v_mov_b32 v2, s4
    v_mov_b32 v3, 0x7ffffff0
    v_cmp_eq_u32 vcc, 0, v0
    s_add_u32 s4, s{S_NONCE}, 1
    v_mov_b32 v4, s4
    v_cndmask_b32 v3, v3, v2, vcc
    buffer_store_dword v4, v3, s[{S_WS}:{S_WS+3}], 0 offen sc1
    """)

KG_BASE = 24576
def kgen_part(a, mid=None, chan=None, base=None, skip3=True, tag='m', hooks=(), wave3=None):
    b = Asm()
    k_kgen.gen_kgen(b, False)
    lines = b.text().split('\n')
    i0 = next(i for i, l in enumerate(lines) if 's_lshl_b32 s38, s36, 8' in l)
    i1 = next(i for i, l in enumerate(lines) if 's_lshl_b32 s38, s36, 12' in l)
    iw = next(i for i, l in enumerate(lines) if i > i0 and l.strip() == 's_waitcnt vmcnt(0)')
    smap = {36: 54, 37: 55, 38: 56, 39: 57, 40: 4, 41: 5, 42: 6, 43: 7, 44: 58, 45: 59,
            8: 20, 9: 21, 10: 22, 11: 23, 12: 24, 13: 25, 14: 26, 15: 27, 16: 28, 17: 29, 18: 30, 19: 31,
            20: 32, 21: 33, 22: 34, 23: 35, 32: 60, 33: 61}
    def remap(t):
        t = re.sub(r'\bs\[(\d+):(\d+)\]', lambda m: f"s[{smap[int(m.group(1))]}:{smap[int(m.group(2))]}]", t)
        return re.sub(r'\bs(\d+)\b', lambda m: f"s{smap[int(m.group(1))]}", t)
    a(f"""
    s_load_dwordx4 s[4:7], s[0:1], {KA['logA']}
    s_load_dwordx2 s[62:63], s[0:1], {KA['Cre']}
    s_load_dwordx2 s[64:65], s[0:1], {KA['Cim']}
    s_load_dwordx2 s[60:61], s[0:1], {KA['logdt']}
    {chan}
    s_mul_i32 s55, s{S_WV}, {k_kgen.KG_WSZ}
    s_add_u32 s55, s55, {base}
    v_and_b32 v1, 63, v0
    v_lshlrev_b32 v3, 2, v1
    s_waitcnt lgkmcnt(0)
    """)
    for base, src in ((20, 4), (24, 6), (28, 62), (32, 64)):
        a(f"s_mov_b32 s{base}, s{src}\n s_mov_b32 s{base+1}, s{src+1}\n s_mov_b32 s{base+2}, 147456\n s_mov_b32 s{base+3}, 0x20000")
    a(remap('\n'.join(lines[i0:iw])))
    if mid: mid(a)
    if skip3: a(f"s_cmp_eq_u32 s{S_WV}, 3\n s_cbranch_scc1 L_kg_w3_{tag}")
    L_ = remap('\n'.join(lines[iw:i1])).split('\n')
    pos = sorted((int(len(L_)*f), k) for k, (f, h) in enumerate(hooks))
    for i, l in enumerate(L_):
        while pos and pos[0][0] <= i: hooks[pos.pop(0)[1]][1](a)
        a(l)
    KA_ = 88
    a(f"""
    s_add_u32 s56, s55, 4096
    v_add_u32 v16, s56, v16
    v_add_u32 v20, s56, v20
    v_add_u32 v21, s56, v21
    v_add_u32 v22, s56, v22
    v_cvt_pk_f16_f32 v100, v{KA_}, v{KA_+1}
    v_cvt_pk_f16_f32 v101, v{KA_+2}, v{KA_+3}
    ds_write_b64 v16, v[100:101]
    """)
    for r in range(4): a(f"ds_write_b32 v{8+r}, v{KA_+4+r}")
    for r in range(4): a(f"ds_write_b32 v{12+r}, v{KA_+8+r}")
    a("s_waitcnt lgkmcnt(0)")
    for sg, ve in enumerate([17, 18, 19]):
        c = 104 + 4*sg
        a(f"ds_read_b64 v[{c}:{c+1}], v{ve}")
        a(f"ds_read_b32 v{c+2}, v{ve} offset:8")
    a(f"""
    s_lshl_b32 s57, s54, 2
    s_add_u32 s57, s57, {WS_KS}
    v_mov_b32 v126, 0x7ffffff0
    v_cmp_eq_u32 vcc, 0, v1
    v_mov_b32 v127, s57
    s_nop 0
    v_cndmask_b32 v126, v126, v127, vcc
    buffer_store_dword v69, v126, s[{S_WS}:{S_WS+3}], 0 offen sc1
    s_waitcnt lgkmcnt(0)
    v_cvt_pk_f16_f32 v120, v104, v104
    v_cvt_pk_f16_f32 v121, v105, v106
    ds_write_b64 v20, v[120:121]
    v_cvt_pk_f16_f32 v124, v108, v108
    v_cvt_pk_f16_f32 v125, v108, v109
    v_cvt_pk_f16_f32 v126, v109, v109
    v_cvt_pk_f16_f32 v127, v110, v110
    ds_write_b128 v21, v[124:127]
    v_cvt_pk_f16_f32 v128, v112, v112
    v_mov_b32 v129, v128
    v_cvt_pk_f16_f32 v130, v112, v113
    v_cvt_pk_f16_f32 v131, v113, v113
    ds_write_b128 v22, v[128:131]
    v_mov_b32 v132, v131
    v_mov_b32 v133, v131
    v_cvt_pk_f16_f32 v134, v114, v114
    v_mov_b32 v135, v134
    ds_write_b128 v22, v[132:135] offset:1024
    v_lshlrev_b32 v2, 4, v1
    v_add_u32 v3, s56, v2
    s_waitcnt lgkmcnt(0)
    ds_read_b128 v[136:139], v3
    ds_read_b128 v[140:143], v3 offset:1024
    ds_read_b128 v[144:147], v3 offset:2048
    ds_read_b128 v[148:151], v3 offset:3072
    s_lshl_b32 s57, s54, 12
    s_add_u32 s57, s57, {WS_K}
    s_waitcnt lgkmcnt(0)
    buffer_store_dwordx4 v[136:139], v2, s[{S_WS}:{S_WS+3}], s57 offen sc1
    buffer_store_dwordx4 v[140:143], v2, s[{S_WS}:{S_WS+3}], s57 offen offset:1024 sc1
    buffer_store_dwordx4 v[144:147], v2, s[{S_WS}:{S_WS+3}], s57 offen offset:2048 sc1
    buffer_store_dwordx4 v[148:151], v2, s[{S_WS}:{S_WS+3}], s57 offen offset:3072 sc1
    s_branch L_kg_skip_{tag}
    L_kg_w3_{tag}:
    """)
    if wave3: wave3(a)
    a(f"L_kg_skip_{tag}:\n s_nop 1")

def rebuild_issue(a):
    a(f"""
    s_load_dwordx2 s[54:55], s[0:1], {KA['b1']}
    s_load_dwordx2 s[56:57], s[0:1], {KA['u']}
    s_load_dwordx2 s[58:59], s[0:1], {KA['out']}
    s_load_dwordx2 s[60:61], s[0:1], {KA['b2']}
    """)
def rebuild_finish(a):
    from k_ln import srd
    a("s_waitcnt lgkmcnt(0)")
    srd(a, 20, 54, 9216); srd(a, 24, 56, 2359296); srd(a, 28, 58, 2359296); srd(a, 32, 60, 1152)
def rebuild_srds(a):
    rebuild_issue(a); rebuild_finish(a)

def mlp_pre_y(a, st, S_T):
    OT(a, 1)
    ln_part(a, 0, 'm')
    OT(a, 4)
    kgen_part(a, mid=publish_ln_mid, chan=f's_mul_i32 s54, s2, 3\n s_add_u32 s54, s54, s{S_WV}\n s_min_u32 s54, s54, 575', base=KG_BASE)
    OT(a, 7)
    a(f"""
    v_and_b32 v60, 63, v0
    v_min_u32 v2, 15, v60
    s_lshl_b32 s4, s{S_T}, 4
    v_add_u32 v2, s4, v2
    v_lshlrev_b32 v2, 6, v2
    v_add_u32 v5, {F_LN}, v2
    buffer_load_dword v6, v5, s[{S_WS}:{S_WS+3}], 0 offen sc1
    s_mul_i32 s4, s2, 3
    s_add_u32 s4, s4, s{S_WV}
    s_lshl_b32 s4, s4, 6
    s_add_u32 s4, s4, {F_K}
    v_mov_b32 v2, s4
    v_mov_b32 v3, 0x7ffffff0
    v_cmp_eq_u32 vcc, 0, v60
    s_cmp_eq_u32 s{S_WV}, 3
    s_cselect_b64 s[58:59], 0, -1
    s_and_b64 vcc, vcc, s[58:59]
    s_add_u32 s4, s{S_NONCE}, 1
    v_mov_b32 v4, s4
    v_cndmask_b32 v3, v3, v2, vcc
    s_waitcnt vmcnt(0)
    buffer_store_dword v4, v3, s[{S_WS}:{S_WS+3}], 0 offen sc1
    """)
    OT(a, 8)
    k_red.spin_until(a, 5, 1, 6, cache=True, backoff=1)
    OT(a, 9)
    rebuild_srds(a)
    a("s_barrier")

def publish_ln_mid(a):
    OT(a, 5)
    a(f"""
    s_waitcnt vmcnt(5)
    s_barrier
    s_lshl_b32 s62, s2, 6
    s_add_u32 s62, s62, {F_LN}
    v_mov_b32 v24, s62
    v_mov_b32 v25, 0x7ffffff0
    v_cmp_eq_u32 vcc, 0, v0
    s_add_u32 s62, s{S_NONCE}, 1
    v_mov_b32 v26, s62
    v_cndmask_b32 v25, v25, v24, vcc
    buffer_store_dword v26, v25, s[{S_WS}:{S_WS+3}], 0 offen sc1
    """)
    OT(a, 6)


WARM = True
CHEAP = False
SETUP_EARLY = False
SRD_LATE = False
LATEK = False
NSH = 32
PF1Q0, PF1Q1 = 0, 6
NKG_MLP = 192
CONV_PF = True
PFQ0, PFQ1 = 1, 6
PFW1 = True
PFW2 = True
def warm_translations(a, vt=170):
    a(f"""
    s_lshr_b32 s4, s2, 3
    v_and_b32 v{vt}, 63, v0
    v_lshlrev_b32 v{vt}, 5, v{vt}
    v_add_u32 v{vt}, s4, v{vt}
    v_lshlrev_b32 v{vt}, 16, v{vt}            ; 0 .. 128 MB
    v_min_u32 v{vt+1}, {0x2900000}, v{vt}
    buffer_load_dword v{vt+2}, v{vt+1}, s[{S_WS}:{S_WS+3}], 0 offen
    buffer_load_dword v{vt+3}, v{vt}, s[8:11], 0 offen
    buffer_load_dword v{vt+4}, v{vt}, s[12:15], 0 offen
    buffer_load_dword v{vt+5}, v{vt}, s[28:31], 0 offen
    """)
    return 4

def warm_translations_late(a, vt=170):
    a(f"""
    s_lshr_b32 s4, s2, 3
    v_and_b32 v{vt}, 63, v0
    v_lshlrev_b32 v{vt}, 5, v{vt}
    v_add_u32 v{vt}, s4, v{vt}
    v_lshlrev_b32 v{vt}, 16, v{vt}
    v_min_u32 v{vt+1}, {0x2900000}, v{vt}
    buffer_load_dword v{vt+2}, v{vt+1}, s[{S_WS}:{S_WS+3}], 0 offen
    """)

def prefetch_w1_cheap(S_T, S_J, vt=176):
    setup = f"""
    s_and_b32 s66, s{S_T}, {NSH//4 - 1}
    s_lshl_b32 s66, s66, 2
    s_add_u32 s66, s66, s{S_WV}
    s_mul_i32 s67, s{S_J}, 768
    v_and_b32 v{vt}, 63, v0
    v_lshrrev_b32 v{vt+1}, 3, v{vt}
    v_mul_u32_u24 v{vt+1}, 9216, v{vt+1}
    v_and_b32 v{vt}, 7, v{vt}
    v_lshl_add_u32 v{vt}, v{vt}, 4, v{vt+1}
    """
    req = []
    for k in range(-(-432//NSH)):
        req.append(f"""
        s_add_u32 s4, s66, {NSH*k}
        s_min_u32 s4, s4, 431
        s_mul_i32 s5, s4, 911
        s_lshr_b32 s5, s5, 16
        s_mul_i32 s6, s5, 72
        s_sub_u32 s4, s4, s6
        s_mul_i32 s4, s4, {8*9216}
        s_lshl_b32 s5, s5, 7
        s_add_u32 s4, s4, s5
        s_add_u32 s4, s4, s67
        buffer_load_dwordx4 v[{vt+4}:{vt+7}], v{vt}, s[8:11], s4 offen
        """)
    return setup, req

def prefetch_w(which, S_T, S_J, vt=176):
    if which == 1 and CHEAP: return prefetch_w1_cheap(S_T, S_J, vt)
    sa, sb = (66, 67) if which == 1 else (68, 49)
    setup = f"""
    s_and_b32 s4, s{S_T}, 7
    s_lshl_b32 s4, s4, 2
    s_add_u32 s4, s4, s{S_WV}              ; 0..31
    v_and_b32 v{vt}, 63, v0
    """
    req = []
    if which == 1:
        nq = PF1Q1 - PF1Q0; cpr = 8*nq
        magic = (65536 + cpr - 1)//cpr
        assert all((c*magic) >> 16 == c//cpr for c in range(18*cpr))
        setup += f"""
        s_mul_i32 s{sa}, s4, {18*9216}
        s_mul_i32 s5, s{S_J}, 768
        s_add_u32 s{sa}, s{sa}, s5
        s_add_u32 s{sa}, s{sa}, {PF1Q0*128}
        """
        for k in range(-(-18*cpr//64)):
            req.append(f"""
            v_add_u32 v{vt+1}, {64*k}, v{vt}
            v_min_u32 v{vt+1}, {18*cpr - 1}, v{vt+1}
            v_mul_u32_u24 v{vt+2}, {magic}, v{vt+1}
            v_lshrrev_b32 v{vt+2}, 16, v{vt+2}
            v_mul_u32_u24 v{vt+3}, {cpr}, v{vt+2}
            v_sub_u32 v{vt+3}, v{vt+1}, v{vt+3}
            v_mul_u32_u24 v{vt+2}, 9216, v{vt+2}
            v_lshl_add_u32 v{vt+2}, v{vt+3}, 4, v{vt+2}
            buffer_load_dwordx4 v[{vt+4}:{vt+7}], v{vt+2}, s[8:11], s{sa} offen
            """)
    else:
        setup += f"""
        s_mul_i32 s{sa}, s{S_J}, 442368
        s_mul_i32 s5, s4, 13824
        s_add_u32 s{sa}, s{sa}, s5
        v_lshlrev_b32 v{vt+8}, 4, v{vt}
        """
        for k in range(14):
            req.append(f"s_add_u32 s{sb}, s{sa}, {min(1024*k, 13824 - 1024)}\n buffer_load_dwordx4 v[{vt+4}:{vt+7}], v{vt+8}, s[12:15], s{sb} offen")
    return setup, req

import k_half
def mlp_prologue(a, st, y_dma, w_dma, M):
    from sched import VM, DS
    def between(a):
        M.mlp_setup(a)
        a(f"buffer_load_dwordx2 v[160:161], v8, s[{M.S_B1}:{M.S_B1+3}], 0 offen")
        for s_ in range(3):
            for it in w_dma(s_): a(it.text)
        k_half.srds(a)
        k_half.select(a, f"s_lshl_b32 s54, s2, 1\n s_lshr_b32 s56, s{S_WV}, 1\n s_add_u32 s54, s54, s56\n s_min_u32 s54, s54, 575", KG_BASE)
        k_half.loads(a)
        k_half.addr(a)
    OT(a, 1)
    ln_part(a, 0, 'm', between, 15)
    OT(a, 4)
    def h_publish(a):
        OT(a, 5)
        a(f"""
        s_waitcnt vmcnt(0)
        s_barrier
        s_lshl_b32 s4, s2, 6
        s_add_u32 s4, s4, {F_LN}
        v_mov_b32 v162, s4
        v_mov_b32 v163, 0x7ffffff0
        v_cmp_eq_u32 vcc, 0, v0
        s_add_u32 s4, s{S_NONCE}, 1
        v_mov_b32 v164, s4
        v_cndmask_b32 v163, v163, v162, vcc
        buffer_store_dword v164, v163, s[{S_WS}:{S_WS+3}], 0 offen sc1
        """)
        OT(a, 6)
    def h_look(a):
        a(f"""
        v_min_u32 v165, 15, v1
        s_lshl_b32 s4, s{M.S_T}, 4
        v_add_u32 v165, s4, v165
        v_lshlrev_b32 v165, 6, v165
        v_add_u32 v165, {F_LN}, v165
        buffer_load_dword v166, v165, s[{S_WS}:{S_WS+3}], 0 offen sc1
        """)
    def h_y0(a):
        a("s_waitcnt vmcnt(0)")
        k_red.spin_until(a, 165, 1, 166, cache=True, backoff=1, vt2=167)
        a("v_lshlrev_b32 v168, 4, v1")
        for it in y_dma(0): a(it.text.replace(f"v{M.V_Y},", "v168,"))
    hooks = [(PUB_AT, h_publish), (LOOK_AT, h_look), (Y0_AT, h_y0)]
    allreq = []
    if WARM: hooks.append((PUB_AT + 0.005, lambda a: warm_translations_late(a)))
    for which, on, f0, f1 in ((1, PFW1, PF1A, PF1B), (2, PFW2, PF2A, PF2B)):
        if on:
            setup, req = prefetch_w(which, M.S_T, M.S_J)
            hooks.append((f0 - 0.005, lambda a, t=setup: a(t)))
            for k, r in enumerate(req): hooks.append((f0 + (f1 - f0)*k/len(req), lambda a, t=r: a(t)))
            allreq.append((setup, req))
    a(f"s_cmp_ge_u32 s2, {NKG_MLP}\n s_cbranch_scc1 L_m_nokg")
    k_half.body(a, hooks)
    k_half.combine_and_store(a, 'm')
    a("s_branch L_m_kgdone")
    a("L_m_nokg:")
    h_publish(a)
    if WARM: warm_translations_late(a)
    for setup, req in allreq:
        a(setup)
        for r in req: a(r)
    h_look(a); h_y0(a)
    a("s_mov_b32 s57, 1")
    a("L_m_kgdone:")
    OT(a, 7)
    a(f"""
    v_lshlrev_b32 v12, 16, v160
    v_and_b32 v13, 0xffff0000, v160
    v_lshlrev_b32 v14, 16, v161
    v_and_b32 v15, 0xffff0000, v161
    v_min_u32 v5, 95, v0
    v_lshlrev_b32 v5, 4, v5
    v_add_u32 v5, {M.MISC}, v5
    ds_write_b128 v5, v[12:15]
    """)
    a("v_and_b32 v60, 63, v0")
    if LATEK:
        a("s_mov_b32 s93, s54\n s_mov_b32 s92, s57")
        if SRD_LATE: a('s_waitcnt lgkmcnt(0)')
        else: rebuild_srds(a)
        a("s_barrier")
        OT(a, 8)
        M.mlp_setup(a)
        st.vm = []; st.lg = []
        for s_ in (1, 2):
            for it in y_dma(s_): st.put(it)
        M.mlp_setup2(a)
        a("""
        s_cmp_eq_u32 s92, 0
        s_cbranch_scc1 L_m_w17
        s_waitcnt vmcnt(12)
        s_branch L_m_wdone
        L_m_w17:
        s_waitcnt vmcnt(17)
        L_m_wdone:
        """)
        def late_publish(a):
            a("s_mov_b32 s54, s93\n s_mov_b32 s57, s92\n v_and_b32 v1, 63, v0")
            k_half.publish_k(a)
        M.LATE_HOOK = late_publish
        return
    if SETUP_EARLY:
        M.mlp_setup(a)
        M.mlp_setup2(a)
    a("s_waitcnt vmcnt(0) lgkmcnt(0)")
    k_half.publish_k(a)
    if not SRD_LATE: rebuild_srds(a)
    a("s_barrier")
    OT(a, 8)
    if not SETUP_EARLY: M.mlp_setup(a)
    st.vm = ['flagK']; st.lg = []
    for s_ in (1, 2):
        for it in y_dma(s_): st.put(it)
    if not SETUP_EARLY: M.mlp_setup2(a)
PUB_AT, LOOK_AT, Y0_AT = 0.16, 0.45, 0.72
PF1A, PF1B, PF2A, PF2B = 0.18, 0.44, 0.74, 0.97

def conv_prologue(a, ldsbase):
    OT(a, 1)
    ln_part(a, 0, 'c', None, 0)
    OT(a, 4)
    def h_look(a):
        a("v_lshlrev_b32 v250, 6, v1")
        for k in range(4):
            a(f"v_add_u32 v251, {F_LN + k*4096}, v250")
            a(f"buffer_load_dword v{252+k}, v251, s[{S_WS}:{S_WS+3}], 0 offen sc1")
    def h_raw(a):
        OT(a, 1)
        a(f"""
        s_lshl_b32 s60, s54, 6
        s_add_u32 s60, s60, {F_K}
        v_mov_b32 v162, s60
        v_mov_b32 v163, 0x7ffffff0
        v_cmp_eq_u32 vcc, 0, v1
        s_cmp_eq_u32 s{S_WV}, 3
        s_cselect_b64 s[62:63], 0, -1
        s_and_b64 vcc, vcc, s[62:63]
        s_add_u32 s60, s{S_NONCE}, 1
        v_mov_b32 v164, s60
        v_cndmask_b32 v163, v163, v162, vcc
        s_waitcnt vmcnt(0)
        buffer_store_dword v164, v163, s[{S_WS}:{S_WS+3}], 0 offen sc1
        """)
        OT(a, 8)
        for k in range(4):
            a(f"v_add_u32 v251, {F_LN + k*4096}, v250")
            k_red.spin_until(a, 251, 1, 252 + k, cache=True, backoff=2, vt2=250 if False else 249 - 0, stmp=(62, 63))
        a(f"""
        s_sub_u32 s62, s2, 192
        s_mul_i32 s62, s62, {9*16}
        s_mul_i32 s63, s{S_WV}, {64*9216}
        s_add_u32 s62, s62, s63
        s_add_u32 s62, s62, {WS_XT}
        s_mul_i32 s63, s{S_WV}, 9216
        """)
        for m in range(9):
            a(f"""
            v_add_u32 v250, {64*m}, v1
            v_mul_u32_u24 v251, 7282, v250
            v_lshrrev_b32 v251, 16, v251
            v_mul_u32_u24 v252, 9, v251
            v_sub_u32 v252, v250, v252
            v_mul_u32_u24 v251, 9216, v251
            v_lshl_add_u32 v251, v252, 4, v251
            s_add_u32 m0, s63, {m*1024}
            s_nop 0
            buffer_load_dwordx4 v251, s[{S_WS}:{S_WS+3}], s62 offen sc1 lds
            """)
    def wave3(a):
        h_look(a)
        if CONV_PF == 64:
            a(f"""
            s_sub_u32 s66, s2, 192
            v_lshrrev_b32 v244, 3, v1
            v_mul_u32_u24 v244, 9216, v244
            v_and_b32 v245, 7, v1
            v_lshl_add_u32 v244, v245, 4, v244
            """)
            n_ = 0
            for Q in range(PFQ0, PFQ1):
                for k in range(14):
                    n_ += 1
                    if n_ > 48: a("s_waitcnt vmcnt(48)")
                    a(f"""
                    s_add_u32 s62, s66, {64*k}
                    s_min_u32 s62, s62, 863
                    s_mul_i32 s63, s62, 911
                    s_lshr_b32 s63, s63, 16          ; slice
                    s_mul_i32 s67, s63, 72
                    s_sub_u32 s62, s62, s67
                    s_mul_i32 s62, s62, {8*9216}
                    s_mul_i32 s63, s63, 768
                    s_add_u32 s62, s62, s63
                    s_add_u32 s62, s62, {Q*128}
                    buffer_load_dwordx4 v[240:243], v244, s[8:11], s62 offen
                    """)
        elif CONV_PF:
            a(f"""
            s_and_b32 s62, s2, 7
            s_lshr_b32 s62, s62, 1
            s_mul_i32 s62, s62, 2304
            s_sub_u32 s63, s2, 192
            s_lshr_b32 s63, s63, 3              ; 0..7
            s_mul_i32 s63, s63, {72*9216}
            s_add_u32 s62, s62, s63
            v_lshrrev_b32 v244, 3, v1
            v_mul_u32_u24 v244, 9216, v244
            v_and_b32 v245, 7, v1
            v_lshl_add_u32 v244, v245, 4, v244
            """)
            n_ = 0
            for Q in range(PFQ0, PFQ1):
                for sl in range(3):
                    for rg in range(9):
                        n_ += 1
                        if n_ > 48: a("s_waitcnt vmcnt(48)")
                        a(f"s_add_u32 s63, s62, {rg*8*9216 + sl*768 + Q*128}")
                        a(f"buffer_load_dwordx4 v[240:243], v244, s[8:11], s63 offen")
    kgen_part(a, mid=publish_ln_mid, chan=f"s_sub_u32 s54, s2, 192\n s_mul_i32 s54, s54, 3\n s_add_u32 s54, s54, s{S_WV}\n s_add_u32 s54, s54, 384\n s_min_u32 s54, s54, 575",
              base=ldsbase, skip3=True, tag='c', hooks=[(CLOOK_AT, h_look)], wave3=wave3)
    OT(a, 7)
    h_raw(a)
    OT(a, 5)
    rebuild_srds(a)
    a("v_and_b32 v60, 63, v0\n s_barrier")
CLOOK_AT, CRAW_AT = 0.70, 0.50


def kgen_srds(a):
    a(f"""
    s_load_dwordx4 s[4:7], s[0:1], {KA['logA']}
    s_load_dwordx2 s[62:63], s[0:1], {KA['Cre']}
    s_load_dwordx2 s[64:65], s[0:1], {KA['Cim']}
    s_load_dwordx2 s[60:61], s[0:1], {KA['logdt']}
    s_waitcnt lgkmcnt(0)
    """)
    for base, src in ((20, 4), (24, 6), (28, 62), (32, 64)):
        a(f"s_mov_b32 s{base}, s{src}\n s_mov_b32 s{base+1}, s{src+1}\n s_mov_b32 s{base+2}, 147456\n s_mov_b32 s{base+3}, 0x20000")
    a("s_mov_b32 s4, s60\n s_mov_b32 s5, s61\n s_mov_b32 s6, 1152\n s_mov_b32 s7, 0x20000")

def to_plane_layout(a, regs, sbase, t0, t1):
    for r in regs:
        a(f"""
        v_lshrrev_b32 v{t0}, 10, v{r}
        v_and_b32 v{t1}, 0x3ff, v{r}
        v_mul_u32_u24 v{t0}, 1280, v{t0}
        v_add3_u32 v{r}, v{t0}, v{t1}, {sbase}
        """)

def expand_local(a, KA_):
    a(f"""
    v_cvt_pk_f16_f32 v100, v{KA_}, v{KA_+1}
    v_cvt_pk_f16_f32 v101, v{KA_+2}, v{KA_+3}
    ds_write_b64 v16, v[100:101]
    """)
    for r in range(4): a(f"ds_write_b32 v{8+r}, v{KA_+4+r}")
    for r in range(4): a(f"ds_write_b32 v{12+r}, v{KA_+8+r}")
    a("s_waitcnt lgkmcnt(0)")
    for sg, ve in enumerate([17, 18, 19]):
        c = 104 + 4*sg
        a(f"ds_read_b64 v[{c}:{c+1}], v{ve}")
        a(f"ds_read_b32 v{c+2}, v{ve} offset:8")
    a(f"""
    s_waitcnt lgkmcnt(0)
    v_cvt_pk_f16_f32 v120, v104, v104
    v_cvt_pk_f16_f32 v121, v105, v106
    ds_write_b64 v20, v[120:121]
    v_cvt_pk_f16_f32 v124, v108, v108
    v_cvt_pk_f16_f32 v125, v108, v109
    v_cvt_pk_f16_f32 v126, v109, v109
    v_cvt_pk_f16_f32 v127, v110, v110
    ds_write_b128 v21, v[124:127]
    v_cvt_pk_f16_f32 v128, v112, v112
    v_mov_b32 v129, v128
    v_cvt_pk_f16_f32 v130, v112, v113
    v_cvt_pk_f16_f32 v131, v113, v113
    ds_write_b128 v22, v[128:131]
    v_mov_b32 v132, v131
    v_mov_b32 v133, v131
    v_cvt_pk_f16_f32 v134, v114, v114
    v_mov_b32 v135, v134
    ds_write_b128 v22, v[132:135] offset:1280
    s_waitcnt lgkmcnt(0)
    """)

def kgen_local(a, chan, sregion, o_kp, mid=None, hooks=()):
    b = Asm()
    k_kgen.gen_kgen(b, False)
    lines = b.text().split('\n')
    i0 = next(i for i, l in enumerate(lines) if 's_lshl_b32 s38, s36, 8' in l)
    i1 = next(i for i, l in enumerate(lines) if 's_lshl_b32 s38, s36, 12' in l)
    iw = next(i for i, l in enumerate(lines) if i > i0 and l.strip() == 's_waitcnt vmcnt(0)')
    smap = {36: 54, 37: 55, 38: 56, 39: 57, 40: 4, 41: 5, 42: 6, 43: 7, 44: 58, 45: 59,
            8: 20, 9: 21, 10: 22, 11: 23, 12: 24, 13: 25, 14: 26, 15: 27, 16: 28, 17: 29, 18: 30, 19: 31,
            20: 32, 21: 33, 22: 34, 23: 35, 32: 60, 33: 61}
    def remap(t):
        t = re.sub(r'\bs\[(\d+):(\d+)\]', lambda m: f"s[{smap[int(m.group(1))]}:{smap[int(m.group(2))]}]", t)
        return re.sub(r'\bs(\d+)\b', lambda m: f"s{smap[int(m.group(1))]}", t)
    a(chan)
    a(f"s_mov_b32 s55, s{sregion}\n v_and_b32 v1, 63, v0\n v_lshlrev_b32 v3, 2, v1")
    head = [l for l in lines[i0:iw] if not any(x in l for x in ('s_mov_b32 s40, s32', 's_mov_b32 s41, s33', 's_mov_b32 s42, 1152', 's_mov_b32 s43, 0x20000'))]
    a(remap('\n'.join(head)))
    a(f"s_add_u32 s56, s55, {o_kp + 256}")
    to_plane_layout(a, [16, 20, 21, 22], 's56', 37, 38)
    if mid: mid(a)
    L_ = remap('\n'.join(lines[iw:i1])).split('\n')
    pos = sorted((int(len(L_)*f), k) for k, (f, h) in enumerate(hooks))
    for i, l in enumerate(L_):
        while pos and pos[0][0] <= i: hooks[pos.pop(0)[1]][1](a)
        a(l)
    expand_local(a, 88)
    a("v_mov_b32 v61, v69")

def khalf_local(a, chan, sregion0, o_kp, tag):
    a(chan)
    a(f"""
    s_and_b32 s57, s{S_WV}, 1
    s_lshl_b32 s59, s57, 4
    s_mul_i32 s55, s57, CONV_WSZ
    s_add_u32 s55, s55, {sregion0}
    v_and_b32 v1, 63, v0
    v_lshlrev_b32 v3, 2, v1
    """)
    k_half.loads(a)
    t = k_half._parts()['addr'].replace(str(k_half.KG_WSZ), 'CONV_WSZ')
    a(t)
    a(f"s_add_u32 s56, s55, {o_kp + 256}")
    to_plane_layout(a, [16, 20, 21, 22], 's56', 27, 28)
    a("s_waitcnt vmcnt(0)")
    k_half.body(a)
    KA_ = 146
    a(f"""
    s_cmp_eq_u32 s57, 0
    s_cbranch_scc1 L_kl_first_{tag}
    ds_write_b128 v7, v[{KA_}:{KA_+3}]
    ds_write_b128 v7, v[{KA_+4}:{KA_+7}] offset:1024
    ds_write_b128 v7, v[{KA_+8}:{KA_+11}] offset:2048
    s_waitcnt lgkmcnt(0)
    s_barrier
    s_branch L_kl_done_{tag}
    L_kl_first_{tag}:
    s_barrier
    ds_read_b128 v[100:103], v7
    ds_read_b128 v[104:107], v7 offset:1024
    ds_read_b128 v[108:111], v7 offset:2048
    s_waitcnt lgkmcnt(0)
    """)
    for e in range(12): a(f"v_add_f32 v{KA_+e}, v{KA_+e}, v{100+e}")
    expand_local(a, KA_)
    a(f"v_mov_b32 v61, v37\n L_kl_done_{tag}:")

def mlp_prologue_nokg(a, st, y_dma, w_dma, M):
    def between(a):
        M.mlp_setup(a)
        a(f"buffer_load_dwordx2 v[160:161], v8, s[{M.S_B1}:{M.S_B1+3}], 0 offen")
        for s_ in range(3):
            for it in w_dma(s_): a(it.text)
    OT(a, 1)
    ln_part(a, 0, 'm', between, 10)
    OT(a, 4)
    npf = 0
    if PFW1:
        setup, req = prefetch_w(1, M.S_T, M.S_J)
        a(setup)
        for r in req: a(r)
        npf = len(req)
    a(f"""
    v_lshlrev_b32 v12, 16, v160
    v_and_b32 v13, 0xffff0000, v160
    v_lshlrev_b32 v14, 16, v161
    v_and_b32 v15, 0xffff0000, v161
    v_min_u32 v5, 95, v0
    v_lshlrev_b32 v5, 4, v5
    v_add_u32 v5, {M.MISC}, v5
    ds_write_b128 v5, v[12:15]
    s_waitcnt vmcnt({npf})
    s_barrier
    s_lshl_b32 s4, s2, 6
    s_add_u32 s4, s4, {F_LN}
    v_mov_b32 v162, s4
    v_mov_b32 v163, 0x7ffffff0
    v_cmp_eq_u32 vcc, 0, v0
    s_add_u32 s4, s{S_NONCE}, 1
    v_mov_b32 v164, s4
    v_cndmask_b32 v163, v163, v162, vcc
    buffer_store_dword v164, v163, s[{S_WS}:{S_WS+3}], 0 offen sc1
    v_min_u32 v165, 15, v60
    s_lshl_b32 s4, s{M.S_T}, 4
    v_add_u32 v165, s4, v165
    v_lshlrev_b32 v165, 6, v165
    v_add_u32 v165, {F_LN}, v165
    """)
    OT(a, 6)
    M.mlp_setup2(a)
    k_red.spin_until(a, 165, 1, 166, backoff=1, vt2=167)
    OT(a, 8)
    st.vm = []; st.lg = ['b1w']
    for s_ in range(3):
        for it in y_dma(s_): st.put(it)
```

```python
from asmlib import *
from layout import *
from k_fin import unpack
NLOG2E = 0xbfb8aa3b
S_WS, S_WV, S_X, S_OUT, S_B2 = 16, 36, 24, 28, 32
L = 60
SPIN = 20000
RFINE = False
PRELOAD = 2
NQC = 6
BACKOFF = 8
NOSLEEP = False
TAILBO = 2
RFINE2 = False
VX, VB = 64, 228
VO, VFL, VP, VSA, VT, VB2, VSG = 36, 37, 38, 39, 40, 41, 42
ACC, M, SS, O, T = 8, 16, 20, 24, 44
SEL = 88
S_T, S_TG, S_CG, S_U, S_TOK, S_CHO, S_PBASE, S_SB, S_SL = 91, 92, 93, 94, 95, 96, 97, 98, 99

ONE = False
def ready_test(a, need, vtmp, vt2=7, stmp=(4, 5)):
    if not ONE:
        a(f"v_cmp_gt_u32 vcc, {need}, v{vtmp}")
        return
    if isinstance(need, int):
        a(f"s_add_u32 s{stmp[0]}, s{S_NONCE}, {need}")
        a(f"v_subrev_u32 v{vt2}, s{stmp[0]}, v{vtmp}")
        a(f"v_cmp_le_u32 vcc, {16 - need}, v{vt2}")
    else:
        a(f"s_add_u32 s4, s{S_NONCE}, {need}")
        a(f"s_sub_u32 s5, 16, {need}")
        a(f"v_subrev_u32 v{vt2}, s4, v{vtmp}")
        a(f"v_cmp_le_u32 vcc, s5, v{vt2}")

def spin_until(a, vaddr, need, vtmp, cache=False, backoff=None, vt2=7, stmp=(4, 5)):
    lb = a.uid('L_poll'); ok = a.uid('L_ok')
    if cache:
        ready_test(a, need, vtmp, vt2, stmp)
        a(f"s_nop 3\n s_cmp_eq_u64 vcc, 0\n s_cbranch_scc1 {ok}")
    a(f"s_mov_b32 s69, {SPIN}")
    a(f"{lb}:")
    a(f"buffer_load_dword v{vtmp}, v{vaddr}, s[{S_WS}:{S_WS+3}], 0 offen sc1")
    a("s_waitcnt vmcnt(0)")
    ready_test(a, need, vtmp, vt2, stmp)
    a("s_sub_u32 s69, s69, 1")
    a(f"s_cbranch_scc1 {ok}")
    a("s_nop 1")
    a(f"s_cmp_eq_u64 vcc, 0")
    a(f"s_cbranch_scc1 {ok}")
    bo = BACKOFF if backoff is None else backoff
    if bo and not NOSLEEP: a(f"s_sleep {bo}")
    a(f"s_branch {lb}")
    a(f"{ok}:")

def flag_value(a, vdst, progress):
    if ONE: a(f"s_add_u32 s4, s{S_NONCE}, {progress}\n v_mov_b32 v{vdst}, s4")
    else: a(f"v_mov_b32 v{vdst}, {progress}")
def FCONV(): return F_CONV if ONE else WS_FLG + 57344
def FMLP(): return F_MLP if ONE else WS_FLG

def final8(a, M, B2, XS, SS, O, T):
    U = T + 8
    for e in range(4): unpack(a, T+2*e, T+2*e+1, M+e)
    for e in range(4): unpack(a, U+2*e, U+2*e+1, B2+e)
    for e in range(4): a(f"v_pk_add_f32 v[{T+2*e}:{T+2*e+1}], v[{T+2*e}:{T+2*e+1}], v[{U+2*e}:{U+2*e+1}]")
    for e in range(4): a(f"v_cvt_pk_bf16_f32 v{M+e}, v{T+2*e}, v{T+2*e+1}")
    for e in range(4): unpack(a, T+2*e, T+2*e+1, M+e)
    for e in range(8): a(f"v_mul_f32 v{U+e}, {hex(NLOG2E)}, v{T+e}")
    for e in range(8): a(f"v_exp_f32 v{U+e}, v{U+e}")
    for e in range(8): a(f"v_add_f32 v{U+e}, 1.0, v{U+e}")
    for e in range(8): a(f"v_rcp_f32 v{U+e}, v{U+e}")
    a("s_nop 0")
    for e in range(4): a(f"v_pk_mul_f32 v[{T+2*e}:{T+2*e+1}], v[{T+2*e}:{T+2*e+1}], v[{U+2*e}:{U+2*e+1}]")
    for e in range(4): a(f"v_cvt_pk_bf16_f32 v{M+e}, v{T+2*e}, v{T+2*e+1}")
    for e in range(4): unpack(a, T+2*e, T+2*e+1, M+e)
    for e in range(4): unpack(a, U+2*e, U+2*e+1, SS+e)
    for e in range(4): a(f"v_pk_mul_f32 v[{T+2*e}:{T+2*e+1}], v[{T+2*e}:{T+2*e+1}], v[{U+2*e}:{U+2*e+1}]")
    for e in range(4): a(f"v_cvt_pk_bf16_f32 v{M+e}, v{T+2*e}, v{T+2*e+1}")
    for e in range(4): unpack(a, T+2*e, T+2*e+1, M+e)
    for e in range(4): unpack(a, U+2*e, U+2*e+1, XS+e)
    for e in range(4): a(f"v_pk_add_f32 v[{T+2*e}:{T+2*e+1}], v[{T+2*e}:{T+2*e+1}], v[{U+2*e}:{U+2*e+1}]")
    for e in range(4): a(f"v_cvt_pk_bf16_f32 v{O+e}, v{T+2*e}, v{T+2*e+1}")

def geometry(a, q0):
    a(f"""
    s_lshr_b32 s{S_CG}, s{S_WV}, 1
    s_and_b32 s{S_U}, s{S_WV}, 1
    s_lshl_b32 s{S_TOK}, s{S_T}, 7
    s_lshl_b32 s3, s{S_TG}, 5
    s_add_u32 s{S_TOK}, s{S_TOK}, s3          ; token0
    s_lshl_b32 s3, s{S_CG}, 5
    s_lshl_b32 s4, s{S_U}, 4
    s_add_u32 s{S_CHO}, s3, s4                ; 32cg + 16u
    s_lshl_b32 s3, {q0}, 6
    s_add_u32 s5, s{S_CHO}, s3
    v_and_b32 v8, 15, v{L}
    v_lshrrev_b32 v9, 5, v{L}
    v_lshl_add_u32 v8, v9, 4, v8
    v_bfe_u32 v9, v{L}, 4, 1
    v_add_u32 v10, s{S_TOK}, v8
    v_mul_u32_u24 v10, 1152, v10
    v_lshl_add_u32 v10, v9, 4, v10
    s_lshl_b32 s6, s5, 1
    v_add_u32 v{VO}, s6, v10
    v_lshlrev_b32 v11, 4, v9
    v_add_u32 v{VB2}, s6, v11                 ; b2 offset (+128 k)
    s_mul_i32 s3, s{S_T}, 9
    s_add_u32 s3, s3, {q0}
    s_mul_i32 s{S_PBASE}, s3, {12*16384}
    s_lshr_b32 s3, s{S_TG}, 1
    s_lshl_b32 s3, s3, 1
    s_add_u32 s3, s3, s{S_CG}
    s_lshl_b32 s3, s3, 12
    s_add_u32 s{S_PBASE}, s{S_PBASE}, s3
    s_and_b32 s3, s{S_TG}, 1
    s_lshl_b32 s3, s3, 1
    s_add_u32 s3, s3, s{S_U}
    s_lshl_b32 s3, s3, 10
    s_add_u32 s{S_PBASE}, s{S_PBASE}, s3
    s_add_u32 s{S_PBASE}, s{S_PBASE}, {WS_P}
    v_lshlrev_b32 v{VP}, 4, v{L}
    v_lshrrev_b32 v8, 2, v{L}
    v_lshlrev_b32 v8, 12, v8
    v_and_b32 v9, 3, v{L}
    v_lshl_add_u32 v{VSG}, v9, 4, v8
    s_lshl_b32 s3, s5, 12
    s_lshl_b32 s4, s{S_TOK}, 1
    s_add_u32 s3, s3, s4
    s_add_u32 s{S_SB}, s3, {WS_S}
    s_mul_i32 s{S_SL}, s{S_WV}, 6144
    v_bfe_u32 v9, v{L}, 2, 2
    v_bfe_u32 v10, v{L}, 4, 1
    v_lshl_add_u32 v9, v10, 3, v9
    v_lshlrev_b32 v9, 6, v9
    v_lshrrev_b32 v10, 5, v{L}
    v_lshl_add_u32 v9, v10, 5, v9
    v_and_b32 v10, 3, v{L}
    v_lshl_add_u32 v9, v10, 3, v9
    v_add_u32 v{VSA}, s{S_SL}, v9
    v_and_b32 v12, 15, v{L}
    v_lshrrev_b32 v13, 4, v{L}
    v_lshrrev_b32 v14, 3, v12
    v_and_b32 v15, 7, v12
    v_lshrrev_b32 v16, 1, v15
    v_and_b32 v17, 1, v15
    v_lshlrev_b32 v17, 4, v17
    v_mov_b32 v18, 0x3f80
    v_lshlrev_b32 v18, v17, v18
    v_add_u32 v19, 2, v14
    """)
    for half, vi in ((0, 14), (1, 19)):
        a(f"v_cmp_eq_u32 s[50:51], v13, v{vi}")
        for dw in range(4):
            a(f"v_cmp_eq_u32 vcc, {dw}, v16")
            a("s_nop 1")
            a("s_and_b64 vcc, vcc, s[50:51]")
            a("s_nop 1")
            a(f"v_cndmask_b32 v{SEL + 4*half + dw}, 0, v18, vcc")

def xb_loads(a, nq):
    for k in range(nq):
        a(f"buffer_load_dwordx4 v[{VX+4*k}:{VX+4*k+3}], v{VO}, s[{S_X}:{S_X+3}], 0 offen offset:{128*k}")
        a(f"buffer_load_dwordx4 v[{VB+4*k}:{VB+4*k+3}], v{VB2}, s[{S_B2}:{S_B2+3}], 0 offen offset:{128*k}")
def s_stage(a, nq):
    for k in range(nq):
        a(f"s_add_u32 m0, s{S_SL}, {k*1024}")
        a(f"s_add_u32 s50, s{S_SB}, {k*64*4096}")
        a(f"buffer_load_dwordx4 v{VSG}, s[{S_WS}:{S_WS+3}], s50 offen sc1 lds")
def flag_addr_conv(a):
    a(f"v_lshlrev_b32 v{VFL}, 6, v{L}\n v_add_u32 v{VFL}, {FCONV()}, v{VFL}")
def flag_addr_mlp(a):
    a(f"""
    v_min_u32 v8, 11, v{L}
    s_mul_i32 s3, s{S_T}, 12
    v_add_u32 v8, s3, v8
    v_lshlrev_b32 v8, 2, v8
    s_lshr_b32 s3, s{S_TG}, 1
    s_lshl_b32 s3, s3, 1
    s_add_u32 s3, s3, s{S_CG}
    v_add_u32 v8, s3, v8
    v_lshlrev_b32 v8, 6, v8
    v_add_u32 v{VFL}, {FMLP()}, v8
    """)
NB = 3
def loads(a, k, base=None):
    b = 48*(k % NB)
    if base: a(f"s_mov_b32 s50, {base}")
    else: a(f"s_add_u32 s50, s{S_PBASE}, {k*12*16384}")
    for j in range(12):
        a(f"buffer_load_dwordx4 a[{b+4*j}:{b+4*j+3}], v{VP}, s[{S_WS}:{S_WS+3}], s50 offen sc1")
        if j < 11: a("s_add_u32 s50, s50, 16384")
def process(a, k, pending_after, vo=None):
    b = 48*(k % NB)
    a(f"s_waitcnt vmcnt({pending_after})")
    a(f"ds_read_b64_tr_b16 v[{SS}:{SS+1}], v{VSA} offset:{k*1024}")
    a(f"ds_read_b64_tr_b16 v[{SS+2}:{SS+3}], v{VSA} offset:{k*1024 + 256}")
    for j in range(12):
        for h in range(2):
            c_ = vr(ACC + 4*h, 4)
            a(f"v_mfma_f32_16x16x32_bf16 {c_}, {vr(SEL + 4*h, 4)}, {ar(b + 4*j, 4)}, {'0' if j == 0 else c_}")
    a("s_nop 7")
    for e in range(4): a(f"v_cvt_pk_bf16_f32 v{M+e}, v{ACC+2*e}, v{ACC+2*e+1}")
    a("s_waitcnt lgkmcnt(0)")
    final8(a, M, VB + 4*k, VX + 4*k, SS, O, T)
    if vo: a(f"buffer_store_dwordx4 v[{O}:{O+3}], v{vo}, s[{S_OUT}:{S_OUT+3}], 0 offen")
    else: a(f"buffer_store_dwordx4 v[{O}:{O+3}], v{VO}, s[{S_OUT}:{S_OUT+3}], 0 offen offset:{128*k}")

def conv_geometry(a):
    a(f"""
    s_sub_u32 s3, s2, 192
    s_lshr_b32 s{S_T}, s3, 2
    s_and_b32 s{S_TG}, s3, 3
    """)
    geometry(a, 0)
    xb_loads(a, NQC)

GFINE = False
def gen_reducer(a, stamp=None):
    if GFINE: a('s_memrealtime s[70:71]')
    def RT(k):
        if RFINE: a(f"s_memrealtime s[{90+0}:{91}]") if False else None
    a(f"""
    s_waitcnt vmcnt(0)
    s_barrier
    s_sub_u32 s3, s2, 192
    s_lshl_b32 s4, s3, 6
    s_add_u32 s4, s4, {FCONV()}
    v_mov_b32 v2, s4
    v_mov_b32 v3, 0x7ffffff0
    v_cmp_eq_u32 vcc, 0, v0
    s_nop 1
    v_cndmask_b32 v3, v3, v2, vcc
    """)
    flag_value(a, 4, 1)
    a(f"buffer_store_dword v4, v3, s[{S_WS}:{S_WS+3}], 0 offen sc1")
    def GT(k):
        if GFINE: a(f"s_memrealtime s[{70+2*k}:{71+2*k}]")
    GT(1)
    NQ = NQC
    NPRE = min(PRELOAD, NQ)
    flag_addr_mlp(a)
    spin_until(a, VFL, NPRE, VT)
    GT(2)
    for k in range(NPRE): loads(a, k)
    flag_addr_conv(a)
    spin_until(a, VFL, 1, 43)
    GT(3)
    s_stage(a, NQC)
    flag_addr_mlp(a)
    if stamp: stamp(a, 4)
    GT(4)
    done = 0
    after_s = [0]; s_known = [False]
    def proc(n):
        nonlocal done
        if not s_known[0]: n = min(n, 12*after_s[0]); s_known[0] = True
        process(a, done, n); done += 1
    for k in range(NPRE, NQ):
        spin_until(a, VFL, k + 1, VT, cache=True)
        if k < 4: GT(4 + k)
        if k - NB >= done: proc(0)
        loads(a, k); after_s[0] += 1
        if k - 2 >= done: proc(12*(k - done))
    while done < NQ - 2: proc(12*(NQ - 1 - done))
    assert s_known[0]
    process(a, NQ - 2, 12)
    process(a, NQ - 1, 0)
    if GFINE: a('s_waitcnt vmcnt(0)\n s_memrealtime s[88:89]')

TFINE = False
def TT(a, k):
    if TFINE: a(f"s_memrealtime s[{70+2*k}:{71+2*k}]")
def item_setup(a, qexpr):
    geometry(a, qexpr)

def mlp_tail_pre(a, S_TT, S_J):
    a(f"""
    s_mov_b32 s{S_T}, s{S_TT}
    s_and_b32 s{S_TG}, s{S_J}, 3
    s_lshr_b32 s100, s{S_J}, 2
    s_add_u32 s100, s100, 6              ; quad
    s_add_u32 s101, s100, 1
    """)
    TT(a, 1)
    geometry(a, 's100')
    xb_loads(a, 1)
    flag_addr_conv(a)
    TT(a, 2)
    a(f"buffer_load_dword v43, v{VFL}, s[{S_WS}:{S_WS+3}], 0 offen sc1")
    return 3

def mlp_tail_post(a):
    TT(a, 3)
    a('s_waitcnt vmcnt(1)')
    spin_until(a, VFL, 1, 43, cache=True)
    if ONE:
        lb = a.uid('L_tag')
        a(f"""
        s_or_b32 s4, s2, s{S_WV}
        s_cmp_lg_u32 s4, 0
        s_cbranch_scc1 {lb}
        v_mov_b32 v61, 0x7ffffff0
        v_mov_b32 v62, {WS_NONCE}
        v_cmp_eq_u32 vcc, 0, v{L}
        v_mov_b32 v63, s{S_NONCE}
        s_nop 0
        v_cndmask_b32 v61, v61, v62, vcc
        buffer_store_dword v63, v61, s[{S_WS}:{S_WS+3}], 0 offen sc1
        {lb}:
        """)
    TT(a, 4)
    nx = 6 - NQC
    if nx:
        dq = NQC - 6
        lb = a.uid('L_noextra')
        a(f"s_cmp_ge_u32 s100, {6 + nx}\n s_cbranch_scc1 {lb}")
        a(f"""
        s_add_u32 s62, s100, {dq + 1}
        s_sub_u32 s63, s{S_PBASE}, {-dq*12*16384}
        s_sub_u32 s64, s{S_SB}, {-dq*64*4096}
        v_subrev_u32 v61, {-dq*128}, v{VO}
        v_subrev_u32 v62, {-dq*128}, v{VB2}
        """)
        a(f"buffer_load_dwordx4 v[{VX+4}:{VX+7}], v61, s[{S_X}:{S_X+3}], 0 offen")
        a(f"buffer_load_dwordx4 v[{VB+4}:{VB+7}], v62, s[{S_B2}:{S_B2+3}], 0 offen")
        a(f"s_add_u32 m0, s{S_SL}, 1024\n s_nop 0\n buffer_load_dwordx4 v{VSG}, s[{S_WS}:{S_WS+3}], s64 offen sc1 lds")
        flag_addr_mlp(a)
        spin_until(a, VFL, 's62', VT, backoff=TAILBO)
        loads(a, 1, base='s63')
        s_stage(a, 1)
        process(a, 1, 1, vo=61)
        a(f"{lb}:")
        a("s_waitcnt vmcnt(0)")
        s_stage(a, 1)
    else:
        s_stage(a, 1)
    flag_addr_mlp(a)
    spin_until(a, VFL, 's101', VT, backoff=TAILBO)
    TT(a, 5)
    loads(a, 0)
    if TFINE: a('s_waitcnt vmcnt(0)')
    TT(a, 6)
    process(a, 0, 0)
    TT(a, 7)
    if TFINE:
        a('s_waitcnt vmcnt(0)')
        TT(a, 8)
```

```python
WS_Y   = 0x0000000
WS_XT  = 0x0240000
WS_S   = 0x0480000
WS_FLG = 0x06C0000
WS_KS  = 0x06D0000
WS_K   = 0x2500000
WS_P   = 0x0700000
SZ_Y = SZ_XT = SZ_S = 2359296
SZ_P = 16*9*12*4*4096
WS_DBG = 0x2400000
assert WS_Y + SZ_Y <= WS_XT and WS_XT + SZ_XT <= WS_S and WS_S + SZ_S <= WS_FLG
assert WS_P + SZ_P <= WS_DBG
KA = dict(u=0, logA=8, Aim=16, Cre=24, Cim=32, logdt=40, Dskip=48, Bx=56, w1=64, b1=72, w2=80, b2=88, out=96, dbg=104, ws=112)

WS_FL2   = 0x2800000
F_LN     = WS_FL2
F_K      = WS_FL2 + 0x4000
F_MLP    = WS_FL2 + 0x10000
F_CONV   = WS_FL2 + 0x1C000
WS_NONCE = WS_FL2 + 0x1F000
S_NONCE  = 90
```

```python
from asmlib import *

STORE_COST = 8
def cost_of(t):
    op = t.split()[0]
    if op.startswith('s_'): return 0
    if op in ('v_exp_f32','v_rcp_f32','v_sin_f32','v_cos_f32','v_sqrt_f32','v_log_f32','v_rsq_f32'): return 8
    if op.startswith('ds_write_b128'): return 16
    if op.startswith('ds_write_b64'): return 8
    if op.startswith('buffer_store'): return STORE_COST
    return 4

class Item:
    __slots__ = ('text','kind','tag','pre_vm','pre_lg','cost')
    def __init__(self, text, kind='v', tag=None, pre_vm=None, pre_lg=None):
        self.text = text; self.kind = kind; self.tag = tag; self.pre_vm = pre_vm; self.pre_lg = pre_lg
        self.cost = cost_of(text)

def V(text, **k): return Item(text, 'v', **k)
def DS(text, tag=None, **k): return Item(text, 'ds', tag, **k)
def VM(text, tag=None, **k): return Item(text, 'vm', tag, **k)

class Stream:
    def __init__(self, a):
        self.a = a
        self.vm = []; self.lg = []
        self.done_lg = set(); self.visible = set()
        self.done_vm = set()
    def put(self, it):
        if isinstance(it, str): it = Item(it)
        if it.pre_vm is not None: self.wait_vm(it.pre_vm)
        if it.pre_lg is not None: self.wait_lg(it.pre_lg)
        self.a(it.text)
        if it.kind == 'ds': self.lg.append(it.tag)
        elif it.kind == 'vm': self.vm.append(it.tag)
    def _wait(self, q, tags, name, mx, done):
        if not isinstance(tags, (list, set)): tags = [tags]
        idx = -1
        for i, t in enumerate(q):
            if t in tags: idx = i
        if idx < 0: return
        n = len(q) - idx - 1
        n = min(n, mx)
        keep = n
        self.a(f"s_waitcnt {name}({n})")
        for t in q[:len(q)-keep]: done.add(t)
        del q[:len(q)-keep]
    def wait_vm(self, tags): self._wait(self.vm, tags, 'vmcnt', 63, self.done_vm)
    def wait_lg(self, tags): self._wait(self.lg, tags, 'lgkmcnt', 15, self.done_lg)
    def drain_lg(self):
        if self.lg:
            self.a("s_waitcnt lgkmcnt(0)"); self.done_lg |= set(self.lg); self.lg = []
    def drain_vm(self):
        if self.vm:
            self.a("s_waitcnt vmcnt(0)"); self.done_vm |= set(self.vm); self.vm = []
    def barrier(self):
        self.a("s_barrier")
        self.visible |= self.done_lg
    def is_out_lg(self, tag): return tag in self.lg
    def is_out_vm(self, tag): return tag in self.vm

class BG:
    def __init__(self):
        self.qs = []; self.credit = 0.0; self.rate = 0.0
    def pending(self): return sum(len(q) for q in self.qs)
    def add(self, streams, ngaps):
        self.qs = [q for q in self.qs if q] + [list(s) for s in streams]
        tot = sum(i.cost for q in self.qs for i in q)
        self.rate = tot / max(1, ngaps)
        self.credit = 0.0
    def fill(self, st, budget):
        used = 0
        self.credit += self.rate
        while True:
            prog = False
            for q in self.qs:
                while q and q[0].cost == 0:
                    st.put(q.pop(0)); prog = True
            cands = [q for q in self.qs if q and q[0].cost <= budget - used and q[0].cost <= self.credit + 1e-9]
            if not cands:
                cands = [q for q in self.qs if q and used == 0 and budget >= 12 and q[0].cost <= self.credit + 1e-9]
                if not cands: break
            cands.sort(key=lambda q: (-q[0].cost, -sum(i.cost for i in q)))
            q = cands[0]
            it = q.pop(0); st.put(it); used += it.cost; self.credit -= it.cost
        return used
    def flush(self, st):
        while any(self.qs):
            for q in self.qs:
                if q: st.put(q.pop(0))
        self.qs = []; self.credit = 0; self.rate = 0
```

```python
import sys
from asmlib import *
from layout import *
import k_mlp, k_red, sched, k_one
import k_conv2 as k_conv
from k_kgen2 import KG_LDS
from k_ln import gen_ln, LN_LDS
KN = 'recurrent_scan__ssm_conv_s4d__mixer_channel_mlp__prompt_kernel'
def build(opts=()):
    a = Asm()
    k_mlp.stamp(a, 0)
    if 'l1stamp' in opts:
        a('s_memrealtime s[92:93]')
    if k_mlp.PFINE: k_mlp.fstamp(a, 0)
    k_one.OT(a, 0)
    if 'gfine' in opts: a('s_memrealtime s[86:87]')
    if 'codepf1' in opts:
        a(f"""
        s_getpc_b64 s[6:7]
        L_pc_here:
        s_sub_u32 s6, s6, (L_pc_here - {KN})
        s_subb_u32 s7, s7, 0
        s_lshr_b32 s3, s2, 3
        s_and_b32 s3, s3, 31
        s_mul_i32 s3, s3, CODE_SHARE
        v_lshlrev_b32 v2, 4, v0
        v_add_u32 v2, s3, v2
        v_min_u32 v2, CODE_LAST, v2
        v_mov_b32 v3, s7
        v_add_co_u32 v2, vcc, s6, v2
        s_nop 1
        v_addc_co_u32 v3, vcc, 0, v3, vcc
        global_load_dwordx4 v[252:255], v[2:3], off
        """)
    k_mlp.gen_common_head(a)
    if 'l1stamp' in opts:
        a(f's_waitcnt lgkmcnt(0)\n v_mov_b32 v50, s92\n s_lshl_b32 s3, s2, 3\n s_add_u32 s3, s3, {WS_DBG + 0x48000}\n v_mov_b32 v52, s3\n buffer_store_dword v50, v52, s[16:19], 0 offen')
    a("s_cmp_ge_u32 s2, 192\ns_cbranch_scc1 L_conv_role")
    if 'nomlp' not in opts:
        if k_mlp.ONE: k_mlp.PROLOGUE = lambda a, st, y, w: (k_one.mlp_prologue_nokg if k_conv.LOCAL else k_one.mlp_prologue)(a, st, y, w, k_mlp)
        else: k_mlp.mlp_setup(a)
        if 'rfine' in opts: a('s_memrealtime s[72:73]')
        if k_mlp.INK and 'nored' not in opts:
            def _tp(a):
                if k_one.SRD_LATE: k_one.rebuild_finish(a)
                return k_red.mlp_tail_pre(a, k_mlp.S_T, k_mlp.S_J)
            k_mlp.TAILPRE = _tp
            if k_one.SRD_LATE: k_mlp.TAILISSUE = k_one.rebuild_issue
        k_mlp.gen_mlp_main(a)
        if k_mlp.INK and 'nored' not in opts:
            k_red.mlp_tail_post(a)
            a('s_waitcnt vmcnt(0)')
        k_mlp.stamp(a, 5); k_mlp.stamp_out(a, 6)
        if 'tfine' in opts or 'ofine' in opts: k_mlp.fstamp_out(a)
        if 'rfine' in opts:
            a('s_memrealtime s[74:75]\n s_waitcnt lgkmcnt(0)\n v_mov_b32 v8, s72\n v_mov_b32 v9, s74\n v_mov_b32 v10, 0\n v_mov_b32 v11, 0')
            a(f's_lshl_b32 s3, s2, 2\n s_add_u32 s3, s3, s36\n s_lshl_b32 s3, s3, 6\n s_add_u32 s3, s3, {WS_DBG}\n v_mov_b32 v1, s3\n buffer_store_dwordx4 v[8:11], v1, s[16:19], 0 offen\n s_waitcnt vmcnt(0)')
    a("s_branch L_main_done")
    a("L_conv_role:")
    if 'noconv' not in opts:
        stp = k_mlp.stamp if k_mlp.STAMP else None
        k_conv.gen_conv(a, stp, 'sc1' if k_mlp.INK else '', k_red.conv_geometry if (k_mlp.INK and 'nored' not in opts) else None)
        if k_mlp.INK and 'nored' not in opts and 'noconvred' in opts:
            a('s_waitcnt vmcnt(0)\n s_barrier\n s_sub_u32 s3, s2, 192\n s_lshl_b32 s4, s3, 6\n s_add_u32 s4, s4, %d\n v_mov_b32 v3, s4\n v_mov_b32 v4, 1\n buffer_store_dword v4, v3, s[16:19], 0 offen sc1\n s_waitcnt vmcnt(0)' % (WS_FLG + 57344))
            k_mlp.stamp(a, 4); k_mlp.stamp(a, 5)
        elif k_mlp.INK and 'nored' not in opts:
            k_red.gen_reducer(a, stp)
            a('s_waitcnt vmcnt(0)')
            k_mlp.stamp(a, 5)
        else:
            k_mlp.stamp(a, 4); k_mlp.stamp(a, 5)
        k_mlp.stamp_out(a, 6)
        if k_conv.FINE or 'ofine' in opts or 'gfine' in opts: k_mlp.fstamp_out(a)
    a("L_main_done:\ns_endpgm")
    return a.text()
KN = 'recurrent_scan__ssm_conv_s4d__mixer_channel_mlp__prompt_kernel'
if __name__ == '__main__':
    opts = set(sys.argv[2:])
    k_mlp.STAMP = 'stamp' in opts
    k_mlp.OPT = opts
    k_conv.FINE = 'cfine' in opts
    k_conv.PREF = 'nopref' not in opts
    k_mlp.PFINE = 'pfine' in opts
    k_red.RFINE = 'rfine' in opts
    k_red.GFINE = 'gfine' in opts
    k_one.OFINE = 'ofine' in opts
    k_one.WARM = 'nowarm' not in opts; k_one.PFW1 = 'nopf1' not in opts; k_one.PFW2 = 'nopf2' not in opts
    k_one.CONV_PF = 'nocpf' not in opts
    k_one.CHEAP = 'cheap' in opts
    k_one.SETUP_EARLY = 'setupearly' in opts
    k_one.SRD_LATE = 'srdlate' in opts
    if 'cpf64' in opts: k_one.CONV_PF = 64
    k_one.LATEK = 'kdefer' in opts
    if 'sh64' in opts: k_one.NSH = 64
    for o in opts:
        if o.startswith('hk'):
            v = [int(x)/100 for x in o[2:].split('_')]
            k_one.PUB_AT, k_one.LOOK_AT, k_one.Y0_AT, k_one.PF1A, k_one.PF1B = v
    k_one.TLBW = 'notlb' not in opts; k_conv.TLB2 = 'notlb2' not in opts
    for o in opts:
        if o.startswith('pfq'): k_one.PFQ0, k_one.PFQ1 = int(o[3]), int(o[4])
        if o.startswith('mq'): k_one.PF1Q0, k_one.PF1Q1 = int(o[2]), int(o[3])
        if o.startswith('late'): k_conv.W1LATE = int(o[4])
        if o.startswith('xs'): k_conv.XSTEP = int(o[2:])
    k_red.TFINE = k_mlp.TFINE0 = 'tfine' in opts
    k_red.RFINE2 = 'rfine2' in opts
    for o in opts:
        if o.startswith('fine'): k_mlp.FINE = tuple(int(x) for x in o[4:].split(','))
    if 'ink' in opts:
        k_mlp.INK = True; k_mlp.PFLAG = ' sc1'
    if 'plainst' in opts: k_mlp.PFLAG = ''
    if 'ntst' in opts: k_mlp.PFLAG = ' sc1 nt'
    if 'sc01' in opts: k_mlp.PFLAG = ' sc0 sc1'
    if 'one' in opts:
        k_mlp.ONE = k_red.ONE = k_conv.ONE = True
    k_conv.LOCAL = 'local' in opts
    if 'shallow' in opts: k_mlp.DEEP = False
    k_mlp.ILV = 'ilv' in opts
    k_red.NOSLEEP = 'nosleep' in opts
    k_conv.W2HALF = 'w2half' in opts
    for o in opts:
        if o.startswith('tb'): k_red.TAILBO = int(o[2:])
    if 'batch' in opts: k_mlp.BATCH = True; k_mlp.START_ST = 11
    if 'nopk' in opts: k_mlp.PK = False
    for o in opts:
        if o.startswith('pd2_'): k_mlp.PD2 = int(o[4:])
        if o.startswith('ramp'): k_mlp.RAMP = int(o[4:])
        if o.startswith('bo'): k_red.BACKOFF = int(o[2:])
        if o.startswith('nqc'): k_red.NQC = int(o[3:])
        if o.startswith('pre'): k_red.PRELOAD = int(o[3:])
        if o.startswith('fd'): k_mlp.FLAGD = int(o[2:])
        if o.startswith('c2at'): k_mlp.C2AT = int(o[4:])
        if o.startswith('gb'): k_mlp.GAPB = int(o[2:])
        if o.startswith('pkm'): k_mlp.PKMODE = int(o[3:])
        if o.startswith('hn'): k_mlp.HEADN = int(o[2:])
        if o.startswith('pb'): k_mlp.PREBAR = int(o[2:])
        if o.startswith('stc'): sched.STORE_COST = int(o[3:])
        if o.startswith('stp'): k_mlp.STPACE = int(o[3:])
        if o.startswith('stst'): k_mlp.START_ST = int(o[4:])
        if o.startswith('dc'): k_mlp.DCOST = int(o[2:])
    body = build(opts)
    l1 = gen_ln(kgen=True, prefetch=('lnpref' in opts), codepf=(KN if 'codepf' in opts else None), stamp=(2 if 'kfine' in opts else ('l1stamp' in opts)))
    if 'l1sc1' in opts:
        import re
        l1 = re.sub(r'(buffer_store_dword\S* [^\n]*offen[^\n]*)', r'\1 sc1', l1)
    if 'l1nt' in opts:
        import re
        l1 = re.sub(r'(buffer_store_dword\S* [^\n]*offen[^\n]*)', r'\1 nt', l1)
    if 'one' in opts:
        txt = build_file([(None, (256,1,1), (256,1,1), 163840)], [(KN, body, 512, 102, 256)])
        if 'codepf1' in opts:
            import subprocess, re
            txt = txt.replace('.section .rodata', 'L_code_end:\n.section .rodata', 1)
            tmp = txt.replace('CODE_SHARE', '0x1000').replace('CODE_LAST', '0x10000')
            open('_sz.s', 'w').write(tmp)
            subprocess.run(['clang', '-x', 'assembler', '-target', 'amdgcn-amd-amdhsa', '-mcpu=gfx950', '-c', '_sz.s', '-o', '_sz.o'], check=True)
            o = subprocess.run(['llvm-objdump', '-t', '_sz.o'], capture_output=True, text=True).stdout
            ad = {l.split()[-1]: int(l.split()[0], 16) for l in o.split('\n') if re.match(r'^[0-9a-f]{16} ', l)}
            size = ad['L_code_end'] - ad[KN]
            share = ((size // 32) + 15) & ~15
            assert share <= 4096
            txt = txt.replace('CODE_SHARE', hex(share)).replace('CODE_LAST', hex((size - 16) & ~15))
        open(sys.argv[1], 'w').write(txt)
        sys.exit(0)
    txt = build_file([('ln_kernel', (256,1,1), (640,1,1), KG_LDS), (KN, (256,1,1), (256,1,1), 163840)],
                     [('ln_kernel', l1, 160, 96, 160), (KN, body, 512, 102, 256)])
    if 'codepf' in opts:
        import subprocess, re
        txt = txt.replace('.section .rodata', 'L_code_end:\n.section .rodata', 1)
        tmp = txt.replace('CODE_SHARE', '0x1000').replace('CODE_LAST', '0x10000')
        open('_sz.s', 'w').write(tmp)
        subprocess.run(['clang', '-x', 'assembler', '-target', 'amdgcn-amd-amdhsa', '-mcpu=gfx950', '-c', '_sz.s', '-o', '_sz.o'], check=True)
        o = subprocess.run(['llvm-objdump', '-t', '_sz.o'], capture_output=True, text=True).stdout
        ad = {l.split()[-1]: int(l.split()[0], 16) for l in o.split('\n') if re.match(r'^[0-9a-f]{16} ', l)}
        size = ad['L_code_end'] - ad[KN]
        share = ((size // 32) + 15) & ~15
        txt = txt.replace('CODE_SHARE', hex(share)).replace('CODE_LAST', hex((size - 16) & ~15))
    open(sys.argv[1], 'w').write(txt)
```
